```python
import torch

def _softmax(x, axis=-1):
    return torch.softmax(x, dim=axis)
def _gelu(x):
    return torch.nn.functional.gelu(x, approximate="tanh")
def _silu(x):
    return torch.nn.functional.silu(x)
def _sigmoid(x):
    return torch.sigmoid(x)
def _layernorm(x, axis=-1, eps=1e-5):
    m = x.mean(dim=axis, keepdim=True)
    v = x.var(dim=axis, keepdim=True, unbiased=False)
    return (x - m) / torch.sqrt(v + eps)
def _scatter_add(tgt, idx, src, axis=0):
    return tgt.clone().index_add_(axis, idx, src)
def _segment_sum(src, seg, n):
    out = torch.zeros((n,) + src.shape[1:], dtype=src.dtype)
    return out.index_add_(0, seg, src)
def _pad(x, pw):
    flat = tuple(v for pair in reversed(pw) for v in pair)
    return torch.nn.functional.pad(x, flat)

kernel_name = 'standalone__gqa_block_cached__near_ridge'

def setup_inputs():

    _w = (lambda a: (lambda t: t.to(torch.bfloat16) if t.is_floating_point() else t)(torch.as_tensor(a)))
    B, Sq, D = 16, 96, 640
    Hq, Hkv, Sk, Dh = 32, 32, 512, 128
    assert Hq % Hkv == 0, (Hq, Hkv)
    return {
        "x": _w((lambda *s: torch.randn(*s, dtype=torch.bfloat16) * 0.8)(B, Sq, D)),
        "k_cache": _w((lambda *s: torch.randn(*s, dtype=torch.bfloat16) * 0.8)(B, Hkv, Sk, Dh)),
        "v_cache": _w((lambda *s: torch.randn(*s, dtype=torch.bfloat16) * 0.05)(B, Hkv, Sk, Dh)),
        "wq": _w((lambda *s: torch.randn(*s, dtype=torch.bfloat16) * 0.8)(D, Hq * Dh) * (D ** -0.5)),
        "wo": _w((lambda *s: torch.randn(*s, dtype=torch.bfloat16) * 0.05)(Hq * Dh, D) * ((Hq * Dh) ** -0.5)),
    }

def reference(x, k_cache, v_cache, wq, wo):
    B, Sq, D = x.shape
    Hq, Dh = 32, 128
    Hkv = k_cache.shape[1]
    rep = Hq // Hkv
    q = (lambda x, *d: x.permute(*d))((x @ wq).reshape(B, Sq, Hq, Dh), 0, 2, 1, 3)
    k = (lambda x, n, axis: torch.repeat_interleave(x, n, dim=axis))(k_cache, rep, axis=1)
    v = (lambda x, n, axis: torch.repeat_interleave(x, n, dim=axis))(v_cache, rep, axis=1)
    scores = torch.einsum("bhqd,bhkd->bhqk", q, k) * (Dh ** -0.5)
    p = _softmax(scores, axis=-1)
    o = torch.einsum("bhqk,bhkd->bhqd", p, v)
    return (lambda x, *d: x.permute(*d))(o, 0, 2, 1, 3).reshape(B, Sq, Hq * Dh) @ wo
```

```python
import re

class Asm:
    def __init__(self):
        self.lines = []
        self.lds_q = []
        self.vm_q = []
    def __call__(self, s):
        for ln in s.split("\n"):
            ln = ln.strip()
            if ln:
                self.lines.append(ln)
    def label(self, name):
        self.lines.append(name + ":")
    def comment(self, s):
        self.lines.append("; " + s)
    def ds(self, s, tag=None):
        self(s); self.lds_q.append(tag)
    def wait_ds(self, tag=None):
        if tag is None:
            n = 0
        else:
            idx = [i for i, t in enumerate(self.lds_q) if t == tag]
            if not idx:
                return
            n = len(self.lds_q) - 1 - idx[-1]
        n = min(n, 15)
        self(f"s_waitcnt lgkmcnt({n})")
        self.lds_q = self.lds_q[len(self.lds_q) - n:] if n else []
    def vm(self, s, tag=None):
        self(s); self.vm_q.append(tag)
    def wait_vm(self, tag=None):
        if tag is None:
            n = 0
        else:
            idx = [i for i, t in enumerate(self.vm_q) if t == tag]
            if not idx:
                return
            n = len(self.vm_q) - 1 - idx[-1]
        n = min(n, 63)
        self(f"s_waitcnt vmcnt({n})")
        self.vm_q = self.vm_q[len(self.vm_q) - n:] if n else []
    def text(self):
        out = []
        for ln in self.lines:
            if ln.endswith(":") or ln.startswith(".") or ln.startswith(";"):
                out.append(ln)
            else:
                out.append("    " + ln)
        return "\n".join(out) + "\n"

def vr(base, n=1):
    return f"v{base}" if n == 1 else f"v[{base}:{base+n-1}]"
def sr(base, n=1):
    return f"s{base}" if n == 1 else f"s[{base}:{base+n-1}]"

_REG = re.compile(r"^(-|abs\()?(v|s|a)(\d+|\[(\d+):(\d+)\])\)?$")
def regs_of(tok):
    tok = tok.strip()
    if tok in ("vcc", "vcc_lo", "vcc_hi"): return {"vcc"}
    if tok in ("exec", "exec_lo", "exec_hi"): return {"exec"}
    if tok == "m0": return {"m0"}
    m = _REG.match(tok)
    if not m: return set()
    k = m.group(2)
    if m.group(4) is not None:
        return {f"{k}{i}" for i in range(int(m.group(4)), int(m.group(5)) + 1)}
    return {f"{k}{m.group(3)}"}

TRANS = ("v_exp_f32", "v_log_f32", "v_rcp_f32", "v_rsq_f32", "v_sqrt_f32", "v_sin_f32", "v_cos_f32")
class Ins:
    def __init__(self, text, idx):
        self.text = text; self.idx = idx
        t = text.split(";")[0].strip()
        parts = t.split(None, 1)
        self.mn = parts[0]
        ops = []
        if len(parts) > 1:
            ops = [p.strip() for p in parts[1].split(",")]
            last = ops[-1].split()
            ops[-1] = last[0]; self.mods = last[1:]
        else:
            self.mods = []
        self.ops = ops
        mn = self.mn
        self.base = re.sub(r"_e(32|64)$", "", mn)
        self.is_mfma = mn.startswith("v_mfma")
        self.is_valu = mn.startswith("v_") and not self.is_mfma
        self.is_ds = mn.startswith("ds_")
        self.is_vmem = mn.startswith("buffer_") or mn.startswith("global_")
        self.is_salu = mn.startswith("s_")
        self.w = set(); self.r = set()
        R = [regs_of(o) for o in ops]
        if self.is_mfma:
            self.w = R[0]; self.a = R[1]; self.b = R[2]; self.c = R[3]; self.r = R[1] | R[2] | R[3]
            self.passes = 8 if "32x32x16" in mn else 4
        elif self.is_valu:
            if self.base.startswith("v_cmp"):
                self.w = R[0]; self.r = set().union(*R[1:])
                if self.base.startswith("v_cmpx"): self.w |= {"exec"}
            elif self.base.startswith("v_permlane") and "swap" in self.base:
                self.w = R[0] | R[1]; self.r = R[0] | R[1]
            elif self.base in ("v_add_co_u32", "v_sub_co_u32", "v_addc_co_u32", "v_subb_co_u32"):
                self.w = R[0] | R[1]; self.r = set().union(*R[2:])
            elif self.base == "v_nop":
                pass
            else:
                self.w = R[0]; self.r = set().union(*R[1:]) if len(R) > 1 else set()
                if self.base in ("v_fmac_f32", "v_writelane_b32", "v_pk_fmac_f16"): self.r |= R[0]
                if self.base == "v_cndmask_b32" and len(ops) == 3: self.r |= {"vcc"}
        elif self.is_ds:
            if "read" in mn or "permute" in mn or "swizzle" in mn:
                self.w = R[0]; self.r = set().union(*R[1:]) if len(R) > 1 else set()
            else:
                self.r = set().union(*R)
        elif self.is_vmem:
            lds = "lds" in self.mods
            if "load" in mn and not lds:
                self.w = R[0]; self.r = set().union(*R[1:])
            elif "load" in mn:
                self.r = set().union(*R) | {"m0"}
            elif "atomic" in mn:
                self.r = set().union(*R)
                if "sc0" in self.mods: self.w = R[0]
            elif mn.startswith("buffer_wbl2") or mn.startswith("buffer_inv"):
                pass
            else:
                self.r = set().union(*R)
                if mn.startswith("buffer_"): self.data = R[0]
                else: self.data = R[1]
        elif self.is_salu:
            if mn.startswith(("s_cmp", "s_cbranch", "s_branch", "s_waitcnt", "s_barrier", "s_nop", "s_endpgm", "s_setprio", "s_sleep", "s_bitcmp")):
                self.r = set().union(*R) if R else set()
            else:
                self.w = R[0] if R else set(); self.r = set().union(*R[1:]) if len(R) > 1 else set()
                if "saveexec" in mn: self.w |= {"exec"}
        self.states = 1
        if mn == "s_nop": self.states = int(ops[0]) + 1

def need(p, c):
    n = 0
    isv = lambda s: {x for x in s if x[0] in "va" and x not in ("vcc",)}
    iss = lambda s: {x for x in s if (x[0] == "s") or x == "vcc"}
    if p.is_mfma:
        D = p.w
        big = {8: 12, 4: 8}[p.passes]
        if c.is_mfma:
            if (c.a | c.b) & D: n = max(n, big)
            if c.c & D and not (c.c == D and c.passes == p.passes): n = max(n, big - 2)
            if c.w & D and not (c.c == D and c.w == D): n = max(n, big)
        elif c.is_valu or c.is_ds or c.is_vmem:
            if (c.r | c.w) & D: n = max(n, big)
        if c.is_valu and c.w & p.c: n = max(n, {8: 7, 4: 3}[p.passes])
    if p.is_valu:
        wv = isv(p.w); ws = iss(p.w)
        if c.is_mfma and c.r & wv: n = max(n, 2)
        if c.is_valu:
            if c.base.startswith("v_permlane") and c.r & wv: n = max(n, 2)
            if "dpp" in c.text or "row_" in c.text:
                if c.r & wv: n = max(n, 2)
            if c.base in ("v_readlane_b32", "v_readfirstlane_b32") and c.r & wv: n = max(n, 1)
            if c.r & ws: n = max(n, 2)
            if c.base in ("v_readlane_b32", "v_writelane_b32") and len(c.ops) > 2 and regs_of(c.ops[2]) & ws: n = max(n, 4)
            if p.base in TRANS and c.base not in TRANS and c.r & wv: n = max(n, 1)
            if p.base in TRANS and c.base in TRANS and c.r & wv: n = max(n, 1)
            if "exec" in p.w and (c.base.startswith("v_permlane") or c.base.startswith("v_read")): n = max(n, 4)
        if c.is_vmem and c.r & ws: n = max(n, 5)
        if c.is_mfma and "exec" in p.w: n = max(n, 4)
    if p.is_salu and "m0" in p.w and c.is_vmem and "m0" in c.r: n = max(n, 1)
    if p.is_vmem and hasattr(p, "data") and len(p.data) >= 3 and (c.is_valu or c.is_mfma or c.is_ds or c.is_vmem) and c.w & p.data: n = max(n, 2)
    return n

def check_hazards(text, maxwin=14):
    ins = []; labels = {}
    for ln in text.split("\n"):
        s = ln.split(";")[0].strip()
        if not s or s.startswith("."): continue
        if s.endswith(":"):
            labels[s[:-1]] = len(ins); continue
        ins.append(Ins(s, len(ins)))
    def succ(i):
        x = ins[i]
        if x.mn == "s_endpgm": return []
        if x.mn == "s_branch": return [labels[x.ops[0]]]
        out = [i + 1] if i + 1 < len(ins) else []
        if x.mn.startswith("s_cbranch"): out.append(labels[x.ops[0]])
        return out
    probs = []
    for p in ins:
        if not (p.is_mfma or p.is_valu or (p.is_salu and "m0" in p.w) or (p.is_vmem and hasattr(p, "data"))): continue
        stack = [(j, 0) for j in succ(p.idx)]
        seen = {}
        while stack:
            j, d = stack.pop()
            if d >= maxwin or j >= len(ins): continue
            if j in seen and seen[j] <= d: continue
            seen[j] = d
            c = ins[j]
            n = need(p, c)
            if n > d:
                probs.append(f"HAZARD need {n} have {d}: [{p.idx}] {p.text}  ->  [{c.idx}] {c.text}")
            for k in succ(j): stack.append((k, d + c.states))
    return probs
```

```python
import sys, math
sys.path.insert(0, "gen")
from asmlib import *

NAME = "standalone__gqa_block_cached__near_ridge"
CFG = dict(nt=1, stamps=0, kvpre=(3, 7, 11, 15, 18))
for a in sys.argv[2:]:
    k, v = a.split("=")
    CFG[k] = eval(v)

MFMA = "v_mfma_f32_32x32x16_bf16"
CSC = math.log2(math.e) / math.sqrt(128.0)
import struct
def f2u(x): return struct.unpack("<I", struct.pack("<f", x))[0]
TLOG2 = 10.0

KV_BASE, KV_SLOT, KV_N = 0, 16384, 5
W_BASE, W_SLOT, W_N = 81920, 16384, 3
X_BASE, X_SLOT = 131072, 12288
WS_O = 0
WS_P = 16 << 20
WS_STAMP = 128 << 20

sW = 3
sX, sWQ, sK, sV, sWS, sWO, sOUT = 20, 24, 28, 32, 36, 40, 44
sB, sKQ, sCT, sH0 = 48, 49, 50, 51
sT0, sT1, sT2, sT3 = 52, 53, 54, 55
sC, sTR = 56, 57
sCnt, sSlot, sDelta, sDX = 58, 59, 60, 61
sXo, sWo, sCx = 62, 63, 64
sKVo = 65
sSt = 70

def srd(A, d, lo, hi, n):
    A(f"s_mov_b32 s{d}, {lo}\ns_mov_b32 s{d+1}, {hi}\ns_mov_b32 s{d+2}, {n}\ns_mov_b32 s{d+3}, 0x20000")

def srd_off(A, d, p, soff, n):
    A(f"s_add_u32 s{d}, s{p}, s{soff}\ns_addc_u32 s{d+1}, s{p+1}, 0\ns_mov_b32 s{d+2}, {n}\ns_mov_b32 s{d+3}, 0x20000")

def header(A, label, nwg):
    A(f".globl {label}\n.p2align 8\n.type {label},@function")
    A.label(label)
    A(f"s_cmp_lt_u32 s2, {nwg}\ns_cbranch_scc1 {label}_go\ns_endpgm")
    A.label(f"{label}_go")
    A("s_load_dwordx16 s[4:19], s[0:1], 0")

def decode(A):
    A(f"""s_and_b32 s{sT0}, s2, 7
    s_lshr_b32 s{sKQ}, s{sT0}, 1
    s_and_b32 s{sT0}, s{sT0}, 1
    s_lshr_b32 s{sT1}, s2, 3
    s_and_b32 s{sCT}, s{sT1}, 3
    s_lshr_b32 s{sT1}, s{sT1}, 2
    s_lshl_b32 s{sB}, s{sT0}, 3
    s_add_u32 s{sB}, s{sB}, s{sT1}
    s_lshl_b32 s{sH0}, s{sKQ}, 3
    s_lshl_b32 s{sT0}, s{sCT}, 1
    s_add_u32 s{sH0}, s{sH0}, s{sT0}
    v_lshrrev_b32 v1, 6, v0
    v_and_b32 v0, 63, v0
    v_readfirstlane_b32 s{sW}, v1""")

def stamp(A, i):
    if CFG["stamps"]:
        A(f"s_memrealtime s[{sSt+2*i}:{sSt+2*i+1}]")

def stamp_flush(A, n, slot0, total):
    if not CFG["stamps"]: return
    A("s_waitcnt lgkmcnt(0) vmcnt(0)")
    A(f"s_mov_b32 s{sT0}, {WS_STAMP}")
    srd_off(A, sOUT, 18, sT0, 0x100000)
    A(f"s_mul_i32 s{sT0}, s2, {total*8}\ns_add_u32 s{sT0}, s{sT0}, {slot0*8}")
    A(f"v_mov_b32 v1, s{sT0}")
    A("s_mov_b64 exec, 1")
    for i in range(n):
        A(f"v_mov_b32 v2, s{sSt+2*i}\nv_mov_b32 v3, s{sSt+2*i+1}")
        A(f"buffer_store_dwordx2 v[2:3], v1, s[{sOUT}:{sOUT+3}], 0 offen offset:{8*i}")
        A("s_nop 1")
    A("s_mov_b64 exec, -1")

def descriptor(A, label, vgpr, sgpr=96):
    A(f""".section .rodata,"a"
.p2align 6
.amdhsa_kernel {label}
.amdhsa_next_free_vgpr {vgpr}
.amdhsa_next_free_sgpr {sgpr}
.amdhsa_accum_offset {(vgpr+3)//4*4}
.amdhsa_group_segment_fixed_size 0
.amdhsa_kernarg_size 64
.amdhsa_user_sgpr_count 2
.amdhsa_user_sgpr_kernarg_segment_ptr 1
.amdhsa_system_sgpr_workgroup_id_x 1
.end_amdhsa_kernel
.text""")

def gemm_epoch(A, rd, mm, post=None):
    A("s_barrier")
    rd(0, 0)
    mm(1)
    rd(1, 1)
    if post: post()
    A.wait_ds(("F", 0))
    mm(0)
    A.wait_ds()

def kernel_A(A):
    L = NAME + "_kernel" if CFG.get("single") else "attn_kernel"
    header(A, L, 256)
    stamp(A, 0)
    decode(A)
    NT = " nt" if CFG["nt"] else ""
    A(f"s_cmp_eq_u32 s{sW}, 7\ns_cbranch_scc1 A_loader")
    A(f"s_cmp_eq_u32 s{sW}, 3\ns_cbranch_scc0 A_compute\ns_endpgm")

    A.label("A_loader")
    vW, vX, vK, vV = 8, 12, 16, 20
    A(f"""v_lshrrev_b32 v1, 5, v0
    v_and_b32 v2, 31, v0
    v_lshlrev_b32 v3, 2, v1
    v_xor_b32 v4, v2, v3
    v_xor_b32 v5, 8, v4
    v_lshlrev_b32 v1, 13, v1
    v_lshl_add_u32 v{vW}, v4, 4, v1
    v_lshl_add_u32 v{vW+1}, v5, 4, v1
    v_add_u32 v{vW+2}, {2*16384-2048}, v{vW}
    v_add_u32 v{vW+3}, {3*16384-3072}, v{vW+1}
    v_add_u32 v{vW+1}, {16384-1024}, v{vW+1}""")
    A(f"""v_lshrrev_b32 v1, 3, v0
    v_and_b32 v2, 7, v0
    v_lshrrev_b32 v3, 4, v0
    v_xor_b32 v4, v2, v3
    v_xor_b32 v5, 4, v4
    v_mul_u32_u24 v1, 1280, v1
    v_lshl_add_u32 v{vX}, v4, 4, v1
    v_lshl_add_u32 v{vX+1}, v5, 4, v1
    v_add_u32 v{vX+2}, {2*10240-2048}, v{vX}
    v_add_u32 v{vX+3}, {3*10240-3072}, v{vX+1}
    v_add_u32 v{vX+1}, {10240-1024}, v{vX+1}""")
    A(f"""v_lshrrev_b32 v1, 4, v0
    v_and_b32 v2, 15, v0
    v_xor_b32 v3, v2, v1
    v_lshlrev_b32 v4, 8, v1
    v_lshl_add_u32 v{vK}, v3, 4, v4
    v_xor_b32 v{vK+1}, 64, v{vK}
    v_xor_b32 v{vK+2}, 0x80, v{vK}
    v_xor_b32 v{vK+3}, 0xc0, v{vK}
    v_lshlrev_b32 v3, 2, v1
    v_xor_b32 v3, v2, v3
    v_lshl_add_u32 v{vV}, v3, 4, v4""")
    A(f"""s_and_b32 s{sT0}, s{sB}, 7
    s_lshr_b32 s{sT1}, s{sT0}, 2
    s_add_u32 s{sT0}, s{sT0}, s{sT1}
    s_mul_i32 s{sT1}, s{sCT}, 5
    s_lshr_b32 s{sT1}, s{sT1}, 1
    s_add_u32 s{sCx}, s{sT0}, s{sT1}
    s_sub_u32 s{sT0}, s{sCx}, 10
    s_cmp_ge_u32 s{sCx}, 10
    s_cselect_b32 s{sCx}, s{sT0}, s{sCx}""")
    if not CFG.get("rot", 1): A(f"s_mov_b32 s{sCx}, 0")
    A(f"s_mul_i32 s{sT0}, s{sB}, 122880\ns_lshl_b32 s{sT1}, s{sH0}, 8\ns_sub_u32 s{sT2}, 5242880, s{sT1}")
    A(f"s_lshl_b32 s{sT3}, s{sB}, 5\ns_add_u32 s{sT3}, s{sT3}, s{sH0}\ns_lshl_b32 s{sT3}, s{sT3}, 17")
    A("s_waitcnt lgkmcnt(0)")
    srd_off(A, sX, 4, sT0, 122880)
    srd_off(A, sWQ, 10, sT1, f"s{sT2}")
    srd_off(A, sK, 6, sT3, 262144)
    srd_off(A, sV, 8, sT3, 262144)

    cxs = {}
    sCX, sCW = 66, 67
    A(f"s_lshl_b32 s{sCX}, s{sCx}, 7\ns_lshl_b32 s{sCW}, s{sCx}, 19")
    def issue_X(c):
        base = X_BASE + (c & 1) * X_SLOT
        for a in range(3):
            A(f"s_mov_b32 m0, {base + a*4096}")
            A(f"s_add_u32 s{sT0}, s{sCX}, {a*40960}")
            for n in range(4):
                A.vm(f"buffer_load_dwordx4 v{vX+n}, s[{sX}:{sX+3}], s{sT0} offen offset:{n*1024} lds", ("X", c))
        A(f"s_add_u32 s{sCX}, s{sCX}, 128\ns_cmp_eq_u32 s{sCX}, 1280\ns_cselect_b32 s{sCX}, 0, s{sCX}")
    def issue_W(j):
        base = W_BASE + (j % W_N) * W_SLOT
        for a in range(4):
            A(f"s_mov_b32 m0, {base + a*4096}")
            A(f"s_add_u32 s{sT0}, s{sCW}, {a*65536}")
            for n in range(4):
                A.vm(f"buffer_load_dwordx4 v{vW+n}, s[{sWQ}:{sWQ+3}], s{sT0} offen offset:{n*1024} lds", ("W", j))
        A(f"s_add_u32 s{sCW}, s{sCW}, {32*8192}")
        if j & 1:
            A(f"s_cmp_eq_u32 s{sCW}, 5242880\ns_cselect_b32 s{sCW}, 0, s{sCW}")
    def issue_KV(e, static=True):
        if static:
            base = KV_BASE + ((e + 1) % KV_N) * KV_SLOT
        for (srdn, tile, off, vo) in ((sK, e + 1, 0, None), (sV, e, 8192, vV)):
            if tile < 0 or tile > 31: continue
            for a in range(2):
                A(f"s_mov_b32 m0, {base + off + a*4096}")
                A(f"s_mov_b32 s{sT0}, {tile*8192 + a*4096}")
                for n in range(4):
                    v = vK + n if vo is None else vo
                    A.vm(f"buffer_load_dwordx4 v{v}, s[{srdn}:{srdn+3}], s{sT0} offen offset:{n*1024}{NT} lds", ("KV", e))
    kvpre = list(CFG["kvpre"])
    issue_X(0); issue_W(0)
    for e, j in zip(range(-1, 4), kvpre):
        if j == -1: issue_KV(e)
    issue_W(1); issue_X(1); issue_W(2)
    for j in range(20):
        A.wait_vm(("W", j))
        if j % 2 == 0: A.wait_vm(("X", j // 2))
        A("s_barrier")
        if j == 0: stamp(A, 1)
        if j >= 2 and j % 2 == 0 and j // 2 + 1 <= 9: issue_X(j // 2 + 1)
        if j >= 1 and j + 2 <= 19: issue_W(j + 2)
        for e, jj in zip(range(-1, 4), kvpre):
            if jj == j: issue_KV(e)
    stamp(A, 2)
    A.wait_vm(("KV", -1)); A("s_barrier")
    A.wait_vm(("KV", 0)); A("s_barrier")
    stamp(A, 3)
    A(f"s_mov_b32 s{sKVo}, {4*8192}\ns_mov_b32 s{sSlot}, {KV_BASE + (5 % KV_N)*KV_SLOT}")
    A.label("A_ld_loop")
    for (srdn, off, add) in ((sK, 0, 8192), (sV, 8192, 0)):
        for a in range(2):
            A(f"s_add_u32 m0, s{sSlot}, {off + a*4096}")
            A(f"s_add_u32 s{sT0}, s{sKVo}, {add + a*4096}")
            for n in range(4):
                v = vK + n if srdn == sK else vV
                A(f"buffer_load_dwordx4 v{v}, s[{srdn}:{srdn+3}], s{sT0} offen offset:{n*1024}{NT} lds")
    A(f"s_add_u32 s{sSlot}, s{sSlot}, {KV_SLOT}\ns_cmp_eq_u32 s{sSlot}, {KV_BASE + KV_N*KV_SLOT}\ns_cselect_b32 s{sSlot}, {KV_BASE}, s{sSlot}")
    A(f"s_add_u32 s{sKVo}, s{sKVo}, 8192")
    A("s_waitcnt vmcnt(48)\ns_barrier")
    A(f"s_cmp_lt_u32 s{sKVo}, {31*8192}\ns_cbranch_scc1 A_ld_loop")
    A.vm_q = [("KV", 28)] * 16 + [("KV", 29)] * 16 + [("KV", 30)] * 16
    issue_KV(31)
    for e in range(28, 32):
        A.wait_vm(("KV", e)); A("s_barrier")
    stamp(A, 4)
    stamp_flush(A, 5, 0, 8)
    A("s_endpgm")

    A.label("A_compute")
    vQ, vO, vS, vP, vKf, vVf = 32, 64, 128, 160, 168, 200
    vKa, vVa, vWa, vXa = 232, 240, 244, 248
    vMr, vM, vThr, vL, vT0, vT1, vSt = 2, 3, 4, 5, 6, 7, 8
    vHi, vN, vG, vR, vCp = 10, 11, 12, 13, 14
    sI, sRr = 66, 67
    A(f"s_and_b32 s{sI}, s{sW}, 3\ns_lshr_b32 s{sRr}, s{sW}, 2")
    A(f"""v_lshrrev_b32 v{vHi}, 5, v0
    v_and_b32 v{vN}, 31, v0
    v_bfe_u32 v{vG}, v0, 4, 1
    v_bfe_u32 v{vR}, v0, 2, 2
    v_and_b32 v1, 1, v0
    v_bfe_u32 v15, v0, 1, 1
    v_lshl_add_u32 v{vCp}, v1, 1, v15
    v_lshlrev_b32 v{vCp}, 3, v{vCp}
    v_lshl_add_u32 v{vCp}, v{vG}, 5, v{vCp}""")
    A(f"""s_lshl_b32 s{sT0}, s{sI}, 12
    s_add_u32 s{sT0}, s{sT0}, {X_BASE}
    v_bfe_u32 v1, v0, 1, 3
    v_xor_b32 v1, v1, v{vHi}
    v_lshlrev_b32 v1, 4, v1
    v_lshl_add_u32 v1, v{vN}, 7, v1""")
    for ks in range(4):
        A(f"v_xor_b32 v15, {ks<<5}, v1\nv_add_u32 v{vXa+ks}, s{sT0}, v15")
    A(f"""s_lshl_b32 s{sT0}, s{sRr}, 8
    s_add_u32 s{sT0}, s{sT0}, {W_BASE}
    v_lshl_add_u32 v1, v{vHi}, 3, v{vR}
    v_lshl_add_u32 v1, v1, 9, v{vCp}
    v_add_u32 v1, s{sT0}, v1""")
    for t in range(4):
        A(f"v_xor_b32 v15, {t}, v{vR}\nv_lshl_add_u32 v{vWa+t}, v15, 6, v1")
    s0r = [KV_BASE + ((-1 + 1) % KV_N) * KV_SLOT, KV_BASE + ((15 + 1) % KV_N) * KV_SLOT]
    A(f"""s_cmp_eq_u32 s{sRr}, 0
    s_cselect_b32 s{sSlot}, {s0r[0]}, {s0r[1]}
    v_and_b32 v1, 15, v0
    v_xor_b32 v1, v1, v{vHi}
    v_lshlrev_b32 v1, 4, v1
    v_lshl_add_u32 v1, v{vN}, 8, v1""")
    for ks in range(8):
        A(f"v_xor_b32 v15, {ks<<5}, v1\nv_add_u32 v{vKa+ks}, s{sSlot}, v15")
    A(f"""s_add_u32 s{sT0}, s{sSlot}, 8192
    v_lshl_add_u32 v1, v{vHi}, 2, v{vR}
    v_lshl_add_u32 v1, v1, 8, v{vCp}
    v_add_u32 v1, s{sT0}, v1""")
    for t in range(4):
        A(f"v_xor_b32 v15, {t}, v{vR}\nv_lshl_add_u32 v{vVa+t}, v15, 6, v1")
    A(f"v_lshlrev_b32 v{vSt}, 4, v0")
    A(f"s_mov_b32 s{sC}, {f2u(CSC):#x}\ns_mov_b32 s{sTR}, {f2u(TLOG2/CSC):#x}")
    FA = [vKf, vKf + 16]; FB = [vVf, vVf + 4]
    for i in range(64): A(f"v_mov_b32 v{vO+i}, 0")
    for i in range(16): A(f"v_mov_b32 v{FA[1]+i}, 0")
    for i in range(4): A(f"v_mov_b32 v{FB[1]+i}, 0")
    A("s_waitcnt lgkmcnt(0)")
    A(f"s_lshl_b32 s{sT0}, s{sB}, 5\ns_add_u32 s{sT0}, s{sT0}, s{sH0}\ns_add_u32 s{sT0}, s{sT0}, s{sRr}")
    A(f"s_mul_i32 s{sT0}, s{sT0}, 24576\ns_lshl_b32 s{sT1}, s{sI}, 11\ns_add_u32 s{sT0}, s{sT0}, s{sT1}")
    srd_off(A, sWS, 18, sT0, 24576)
    A(f"s_mov_b32 s{sCnt}, 0\ns_mov_b32 s{sT2}, 0\ns_mov_b32 s{sDX}, {X_SLOT}")
    A.label("A_q_loop")
    for half in range(2):
        def rd(ks, F):
            A.ds(f"ds_read_b128 {vr(FB[F],4)}, v{vXa + 2*half + ks}", ("F", F))
            for t in range(4):
                for p in range(2):
                    A.ds(f"ds_read_b64_tr_b16 {vr(FA[F]+4*t+2*p,2)}, v{vWa+t} offset:{(16*ks+4*p)*512}", ("F", F))
        def mm(F):
            for t in range(4):
                A(f"{MFMA} {vr(vO+16*t,16)}, {vr(FA[F]+4*t,4)}, {vr(FB[F],4)}, {vr(vO+16*t,16)}")
        def post():
            A(f"s_add_u32 s{sT2}, s{sT2}, 1\ns_mov_b32 s{sDelta}, {W_SLOT}\ns_cmp_eq_u32 s{sT2}, {W_N}\ns_cselect_b32 s{sDelta}, {-(W_N-1)*W_SLOT & 0xffffffff:#x}, s{sDelta}\ns_cselect_b32 s{sT2}, 0, s{sT2}")
            for t in range(4): A(f"v_add_u32 v{vWa+t}, s{sDelta}, v{vWa+t}")
            if half == 1:
                for ks in range(4): A(f"v_add_u32 v{vXa+ks}, s{sDX}, v{vXa+ks}")
                A(f"s_sub_u32 s{sDX}, 0, s{sDX}")
        gemm_epoch(A, rd, mm, post)
    A(f"s_add_u32 s{sCnt}, s{sCnt}, 1\ns_cmp_lt_u32 s{sCnt}, 10\ns_cbranch_scc1 A_q_loop")
    mm(1)
    A("s_nop 7\ns_nop 3")
    for t in range(4):
        if t == 3: A("s_nop 3")
        for j in range(8):
            A(f"v_cvt_pk_bf16_f32 v{vQ+8*t+j}, v{vO+16*t+2*j}, v{vO+16*t+2*j+1}")
    for i in range(64): A(f"v_mov_b32 v{vO+i}, 0")
    A(f"v_mov_b32 v{vMr}, 0xff800000\nv_mov_b32 v{vThr}, 0xff800000\nv_mov_b32 v{vL}, 0\nv_mov_b32 v{vM}, 0")
    A(f"s_cmp_eq_u32 s{sRr}, 0\ns_cbranch_scc1 A_att0\ns_mov_b32 s{sCnt}, 0")
    A.label("A_idle")
    A(f"s_barrier\ns_add_u32 s{sCnt}, s{sCnt}, 1\ns_cmp_lt_u32 s{sCnt}, 16\ns_cbranch_scc1 A_idle")
    A.label("A_att0")
    def ring_scalar():
        A(f"s_add_u32 s{sSlot}, s{sSlot}, {KV_SLOT}\ns_cmp_eq_u32 s{sSlot}, {KV_BASE+KV_N*KV_SLOT}")
        A(f"s_mov_b32 s{sDelta}, {KV_SLOT}\ns_cselect_b32 s{sDelta}, {-(KV_N-1)*KV_SLOT & 0xffffffff:#x}, s{sDelta}\ns_cselect_b32 s{sSlot}, {KV_BASE}, s{sSlot}")
    def kreads():
        for ks in range(8):
            A.ds(f"ds_read_b128 {vr(vKf+4*ks,4)}, v{vKa+ks}", ("K", ks))
    def qk(ks, S):
        A.wait_ds(("K", ks))
        A(f"{MFMA} {vr(S,16)}, {vr(vKf+4*ks,4)}, {vr(vQ+4*ks,4)}, " + ("0" if ks == 0 else vr(S,16)))
    A("s_barrier")
    kreads()
    ring_scalar()
    for ks in range(8): A(f"v_add_u32 v{vKa+ks}, s{sDelta}, v{vKa+ks}")
    for t in range(4): A(f"v_add_u32 v{vVa+t}, s{sDelta}, v{vVa+t}")
    for ks in range(8): qk(ks, vS)
    A("s_nop 7")
    A(f"s_mov_b32 s{sCnt}, 0")
    A.label("A_att_loop")
    for half in range(2):
        Sc, Sn = vS + 16 * half, vS + 16 * (1 - half)
        A("s_barrier")
        kreads()
        A(f"v_max3_f32 v{vT0}, v{Sc}, v{Sc+1}, v{Sc+2}")
        for j in range(6): A(f"v_max3_f32 v{vT0}, v{vT0}, v{Sc+3+2*j}, v{Sc+4+2*j}")
        A(f"v_max_f32 v{vT0}, v{vT0}, v{Sc+15}")
        A(f"v_cmp_lt_f32 vcc, v{vThr}, v{vT0}")
        ring_scalar()
        A(f"s_cbranch_vccnz A_rare{half}")
        A.label(f"A_back{half}")
        fill = []
        def fma(e): return (4, f"v_fma_f32 v{Sc+e}, v{Sc+e}, s{sC}, -v{vM}")
        def ex(e): return (8, f"v_exp_f32 v{Sc+e}, v{Sc+e}")
        def ad(e): return (4, f"v_add_f32 v{vL}, v{vL}, v{Sc+e}")
        def cv(j): return (4, f"v_cvt_pk_bf16_f32 v{vP+j}, v{Sc+2*j}, v{Sc+2*j+1}", ("cv", j))
        def vrd(m, dt, p): return (4, f"ds_read_b64_tr_b16 {vr(vVf+16*m+4*dt+2*p,2)}, v{vVa+dt} offset:{(16*m+8*p)*256}", ("V", m, dt))
        vq = [vrd(m, dt, p) for m in range(2) for dt in range(4) for p in range(2)]
        fill.append(fma(0))
        for e in range(16):
            if e + 1 < 16: fill.append(fma(e + 1))
            fill.append(ex(e))
            if e >= 1: fill.append(ad(e - 1))
            if e >= 2 and e % 2 == 0: fill.append(cv(e // 2 - 1))
            if e >= 2 and vq: fill.append(vq.pop(0))
            if e >= 2 and e < 6 and vq: fill.append(vq.pop(0))
        fill.append((4, "s_nop 0"))
        fill.append(ad(15)); fill.append(cv(7))
        assert not vq
        mf = [("qk", ks) for ks in range(8)] + [("pv", m, dt) for m in range(2) for dt in range(4)]
        done = set()
        def emit_fill(budget, until=None):
            c = 0
            while fill and (c < budget or (until is not None and until not in done)):
                it = fill.pop(0)
                if it[1].startswith("ds_"): A.ds(it[1], it[2])
                else: A(it[1])
                if len(it) > 2: done.add(it[2])
                c += it[0]
        kadds = [f"v_add_u32 v{vKa+ks}, s{sDelta}, v{vKa+ks}" for ks in range(8)]
        vadds = [f"v_add_u32 v{vVa+t}, s{sDelta}, v{vVa+t}" for t in range(4)]
        emit_fill(24)
        for x in mf:
            if x[0] == "qk":
                qk(x[1], Sn)
                emit_fill(28)
            else:
                _, m, dt = x
                if dt == 0:
                    emit_fill(0, ("cv", 4 * m + 3))
                    if m == 1:
                        A(kadds.pop(0)); A(kadds.pop(0))
                    else:
                        emit_fill(8)
                A.wait_ds(("V", m, dt))
                A(f"{MFMA} {vr(vO+16*dt,16)}, {vr(vVf+16*m+4*dt,4)}, {vr(vP+4*m,4)}, {vr(vO+16*dt,16)}")
                if m == 0: emit_fill(28)
                else:
                    for _ in range(3):
                        if kadds: A(kadds.pop(0))
                        elif vadds: A(vadds.pop(0))
        while kadds: A(kadds.pop(0))
        while vadds: A(vadds.pop(0))
        assert not fill and not A.lds_q
    A(f"s_add_u32 s{sCnt}, s{sCnt}, 1\ns_cmp_lt_u32 s{sCnt}, 8\ns_cbranch_scc1 A_att_loop")
    A(f"v_mov_b32 v{vT0}, v{vL}\ns_nop 1\nv_permlane32_swap_b32 v{vT0}, v{vL}\ns_nop 1")
    A(f"v_add_f32 v{vL}, v{vL}, v{vT0}\nv_rcp_f32 v{vL}, v{vL}\ns_nop 3")
    for dt in range(4):
        for j in range(16): A(f"v_mul_f32 v{vO+16*dt+j}, v{vL}, v{vO+16*dt+j}")
        for j in range(8): A(f"v_cvt_pk_bf16_f32 v{vKf+8*dt+j}, v{vO+16*dt+2*j}, v{vO+16*dt+2*j+1}")
        A(f"s_mov_b32 s{sT0}, {dt*6144}")
        for m in range(2):
            A(f"buffer_store_dwordx4 {vr(vKf+8*dt+4*m,4)}, v{vSt}, s[{sWS}:{sWS+3}], s{sT0} offen offset:{m*1024}")
    if CFG["stamps"]:
        A(f"s_cmp_eq_u32 s{sI}, 0\ns_cbranch_scc0 A_nost")
        A("s_waitcnt vmcnt(0)")
        stamp(A, 0)
        A(f"s_cmp_eq_u32 s{sRr}, 0\ns_cbranch_scc0 A_st2")
        stamp_flush(A, 1, 5, 8)
        A("s_endpgm")
        A.label("A_st2")
        stamp_flush(A, 1, 6, 8)
        A.label("A_nost")
    A("s_endpgm")
    for half in range(2):
        A.label(f"A_rare{half}")
        A(f"""v_mov_b32 v{vT1}, v{vT0}
        s_nop 1
        v_permlane32_swap_b32 v{vT1}, v{vT0}
        s_nop 1
        v_max3_f32 v{vT0}, v{vT0}, v{vT1}, v{vMr}
        v_sub_f32 v{vT1}, v{vMr}, v{vT0}
        v_mul_f32 v{vT1}, s{sC}, v{vT1}
        v_exp_f32 v{vT1}, v{vT1}
        v_mov_b32 v{vMr}, v{vT0}
        v_mul_f32 v{vM}, s{sC}, v{vT0}
        v_add_f32 v{vThr}, s{sTR}, v{vT0}
        v_mul_f32 v{vL}, v{vT1}, v{vL}""")
        for i in range(64): A(f"v_mul_f32 v{vO+i}, v{vT1}, v{vO+i}")
        A(f"s_branch A_back{half}")
    descriptor(A, L, 256)

def kernel_B(A):
    L = "oproj_kernel"
    header(A, L, 256)
    decode(A)
    NCH = 32; NS = 8; SL = 16384
    A(f"s_cmp_eq_u32 s{sW}, 4\ns_cbranch_scc0 B_compute")
    vWo, vOo = 8, 20
    for n in range(10):
        A(f"v_add_u32 v1, {64*n}, v0\nv_mul_u32_u24 v2, 3277, v1\nv_lshrrev_b32 v2, 16, v2")
        A(f"v_mul_u32_u24 v3, 20, v2\nv_sub_u32 v3, v1, v3\nv_mul_u32_u24 v2, 1280, v2\nv_lshl_add_u32 v2, v3, 4, v2")
        A(f"v_subrev_u32 v{vWo+n}, {(n%4)*1024}, v2")
    A(f"v_lshlrev_b32 v{vOo}, 4, v0")
    A(f"s_mul_i32 s{sT0}, s{sKQ}, {1024*1280}\ns_mul_i32 s{sT1}, s{sCT}, 320\ns_add_u32 s{sT0}, s{sT0}, s{sT1}\ns_sub_u32 s{sT1}, 5242880, s{sT0}")
    A(f"s_lshl_b32 s{sT2}, s{sB}, 5\ns_lshl_b32 s{sT3}, s{sKQ}, 3\ns_add_u32 s{sT2}, s{sT2}, s{sT3}\ns_mul_i32 s{sT2}, s{sT2}, 24576")
    A(f"s_and_b32 s{sCx}, s{sB}, 7\ns_lshl_b32 s{sCx}, s{sCx}, 2")
    A("s_waitcnt lgkmcnt(0)")
    srd_off(A, sWO, 12, sT0, f"s{sT1}")
    srd_off(A, sWS, 18, sT2, 8 * 24576)
    A(f"s_mov_b32 s{sSlot}, 0")
    def issue():
        A(f"s_mul_i32 s{sT0}, s{sCx}, {32*1280}\ns_mul_i32 s{sT1}, s{sCx}, 6144")
        for n in range(10):
            if n % 4 == 0: A(f"s_add_u32 m0, s{sSlot}, {n*1024}\ns_nop 0")
            A(f"buffer_load_dwordx4 v{vWo+n}, s[{sWO}:{sWO+3}], s{sT0} offen offset:{(n%4)*1024} lds")
        for n in range(6):
            if n % 4 == 0:
                A(f"s_add_u32 m0, s{sSlot}, {10240+n*1024}")
                if n: A(f"s_add_u32 s{sT1}, s{sT1}, 4096")
                else: A("s_nop 0")
            A(f"buffer_load_dwordx4 v{vOo}, s[{sWS}:{sWS+3}], s{sT1} offen offset:{(n%4)*1024} lds")
        A(f"s_add_u32 s{sCx}, s{sCx}, 1\ns_and_b32 s{sCx}, s{sCx}, 31")
        A(f"s_add_u32 s{sSlot}, s{sSlot}, {SL}\ns_and_b32 s{sSlot}, s{sSlot}, {NS*SL-1}")
    D = 3
    A(f"s_mov_b32 s{sCnt}, 0")
    A.label("B_pre")
    issue()
    A(f"s_add_u32 s{sCnt}, s{sCnt}, 1\ns_cmp_lt_u32 s{sCnt}, {D}\ns_cbranch_scc1 B_pre")
    A.label("B_ld")
    issue()
    A(f"s_waitcnt vmcnt({16*D})\ns_barrier")
    A(f"s_add_u32 s{sCnt}, s{sCnt}, 1\ns_cmp_lt_u32 s{sCnt}, {NCH}\ns_cbranch_scc1 B_ld")
    for i in range(D):
        A(f"s_waitcnt vmcnt({16*(D-1-i)})\ns_barrier")
    A("s_endpgm")
    A.label("B_compute")
    vAcc, FA0, vWa, vOa, vSt = 64, 128, 2, 3, 4
    A(f"""v_lshrrev_b32 v10, 5, v0
    v_bfe_u32 v12, v0, 4, 1
    v_bfe_u32 v13, v0, 2, 2
    v_and_b32 v14, 3, v0
    v_lshl_add_u32 v1, v10, 3, v13
    v_mul_u32_u24 v1, 320, v1
    v_lshl_add_u32 v1, v12, 5, v1
    v_lshl_add_u32 v{vWa}, v14, 3, v1
    v_lshlrev_b32 v{vSt}, 4, v0
    v_add_u32 v{vOa}, 10240, v{vSt}""")
    for i in range(64): A(f"v_mov_b32 v{vAcc+i}, 0")
    for i in range(20): A(f"v_mov_b32 v{FA0+20+i}, 0")
    A(f"s_lshl_b32 s{sT0}, s{sB}, 2\ns_add_u32 s{sT0}, s{sT0}, s{sCT}\ns_lshl_b32 s{sT0}, s{sT0}, 2\ns_add_u32 s{sT0}, s{sT0}, s{sKQ}")
    A(f"s_mul_i32 s{sT0}, s{sT0}, 61440\ns_add_u32 s{sT0}, s{sT0}, {WS_P}")
    A("s_waitcnt lgkmcnt(0)")
    srd_off(A, sWS, 18, sT0, 61440)
    A(f"s_mov_b32 s{sCnt}, 0\ns_mov_b32 s{sSlot}, 0")
    A(f"s_cmp_eq_u32 s{sW}, 3\ns_cbranch_scc1 B_w3")
    A(f"s_lshl_b32 s{sT0}, s{sW}, 11\nv_add_u32 v{vOa}, s{sT0}, v{vOa}")
    def post():
        A(f"s_add_u32 s{sSlot}, s{sSlot}, 1\ns_mov_b32 s{sDelta}, {SL}\ns_cmp_eq_u32 s{sSlot}, {NS}\ns_cselect_b32 s{sDelta}, {-(NS-1)*SL & 0xffffffff:#x}, s{sDelta}\ns_cselect_b32 s{sSlot}, 0, s{sSlot}")
        A(f"v_add_u32 v{vWa}, s{sDelta}, v{vWa}\nv_add_u32 v{vOa}, s{sDelta}, v{vOa}")
    for role in (0, 1):
        nA, nB = (4, 1) if role == 0 else (1, 3)
        FA = [FA0, FA0 + 20]; FB = [FA0 + 4 * nA, FA0 + 20 + 4 * nA]
        if role == 1: A.label("B_w3")
        A.label(f"B_loop{role}")
        def rd(ks, F):
            for t in range(nB):
                A.ds(f"ds_read_b128 {vr(FB[F]+4*t,4)}, v{vOa} offset:{t*2048+ks*1024}", ("F", F))
            for t in range(nA):
                c = t if role == 0 else 4
                for p in range(2):
                    A.ds(f"ds_read_b64_tr_b16 {vr(FA[F]+4*t+2*p,2)}, v{vWa} offset:{(16*ks+4*p)*320+64*c}", ("F", F))
        def mm(F):
            for t in range(max(nA, nB)):
                a = FA[F] + (4 * t if role == 0 else 0); b = FB[F] + (0 if role == 0 else 4 * t)
                A(f"{MFMA} {vr(vAcc+16*t,16)}, {vr(a,4)}, {vr(b,4)}, {vr(vAcc+16*t,16)}")
        gemm_epoch(A, rd, mm, post)
        A(f"s_add_u32 s{sCnt}, s{sCnt}, 1\ns_cmp_lt_u32 s{sCnt}, {NCH}\ns_cbranch_scc1 B_loop{role}")
        mm(1)
        A("s_nop 7\ns_nop 3")
        if role == 0: A(f"s_mul_i32 s{sT0}, s{sW}, {5*4096}")
        else: A(f"s_mov_b32 s{sT0}, {4*4096}")
        for t in range(max(nA, nB)):
            if t == max(nA, nB) - 1: A("s_nop 3")
            for jj in range(4):
                A(f"buffer_store_dwordx4 {vr(vAcc+16*t+4*jj,4)}, v{vSt}, s[{sWS}:{sWS+3}], s{sT0} offen offset:{jj*1024}")
            A(f"s_add_u32 s{sT0}, s{sT0}, {4096 if role == 0 else 5*4096}")
        A("s_endpgm")
    descriptor(A, L, 256)

def kernel_C(A):
    L = "reduce_kernel"
    header(A, L, 240)
    A(f"""v_lshrrev_b32 v1, 6, v0
    v_and_b32 v0, 63, v0
    v_readfirstlane_b32 s{sW}, v1
    s_lshl_b32 s{sT0}, s2, 2
    s_nop 2
    s_add_u32 s{sT0}, s{sT0}, s{sW}
    s_mul_i32 s{sT1}, s{sT0}, 4370
    s_lshr_b32 s{sT1}, s{sT1}, 16
    s_mul_i32 s{sT2}, s{sT1}, 15
    s_sub_u32 s{sT2}, s{sT0}, s{sT2}
    s_mul_i32 s{sT3}, s{sT2}, 52
    s_lshr_b32 s{sT3}, s{sT3}, 8
    s_mul_i32 s60, s{sT3}, 5
    s_sub_u32 s60, s{sT2}, s60
    s_mul_i32 s61, s{sT1}, {4*61440}
    s_lshl_b32 s62, s{sT2}, 12
    s_add_u32 s61, s61, s62
    s_add_u32 s61, s61, {WS_P}
    s_lshr_b32 s62, s{sT1}, 2
    s_and_b32 s63, s{sT1}, 3
    s_mul_i32 s62, s62, 96
    s_lshl_b32 s64, s{sT3}, 5
    s_add_u32 s62, s62, s64
    s_mul_i32 s62, s62, 1280
    s_mul_i32 s63, s63, 320
    s_add_u32 s62, s62, s63
    s_lshl_b32 s63, s60, 6
    s_add_u32 s62, s62, s63
    v_and_b32 v1, 31, v0
    v_lshrrev_b32 v2, 5, v0
    v_lshlrev_b32 v3, 10, v2
    v_lshl_add_u32 v3, v1, 4, v3
    v_mul_u32_u24 v4, 1280, v1
    v_lshl_add_u32 v4, v2, 4, v4
    s_waitcnt lgkmcnt(0)""")
    srd_off(A, sWS, 18, 61, 4 * 61440)
    srd(A, sOUT, "s14", "s15", 1966080)
    for kq in range(4):
        A(f"s_mov_b32 s{sT0}, {kq*61440}")
        for ps in range(2):
            for hi in range(2):
                d = 8 + kq * 16 + ps * 8 + hi * 4
                A.vm(f"buffer_load_dwordx4 {vr(d,4)}, v3, s[{sWS}:{sWS+3}], s{sT0} offen offset:{ps*2048+hi*512}", kq)
    for kq in range(1, 4):
        A.wait_vm(kq)
        for j in range(16): A(f"v_add_f32 v{8+j}, v{8+j}, v{8+kq*16+j}")
    for j in range(8): A(f"v_cvt_pk_bf16_f32 v{72+j}, v{8+2*j}, v{9+2*j}")
    for ps in range(2):
        A(f"buffer_store_dwordx4 {vr(72+4*ps,4)}, v4, s[{sOUT}:{sOUT+3}], s62 offen offset:{ps*32}")
    A("s_endpgm")
    descriptor(A, L, 80)

def main():
    A = Asm()
    A("; @launch kernel=attn_kernel grid=(256,1,1) block=(512,1,1) lds=163840")
    A("; @launch kernel=oproj_kernel grid=(256,1,1) block=(320,1,1) lds=131072")
    A("; @launch kernel=reduce_kernel grid=(240,1,1) block=(256,1,1) lds=0")
    A('.amdgcn_target "amdgcn-amd-amdhsa--gfx950"\n.text')
    kernel_A(A); kernel_B(A); kernel_C(A)
    t = A.text()
    probs = check_hazards(t)
    for p in probs[:40]: print(p)
    print("hazards:", len(probs))
    open(sys.argv[1], "w").write(t)
    assert all((p * 3277) >> 16 == p // 20 for p in range(640))
    assert all((p * 4370) >> 16 == p // 15 for p in range(960))
    assert all((p * 52) >> 8 == p // 5 for p in range(15))
main()
```

```python
import sys, math, struct
sys.path.insert(0, "gen")
from asmlib import *

NAME = "standalone__gqa_block_cached__near_ridge"
CFG = dict(nt=1, stamps=0, F=23, DR=18, NPRE2=8, rot=1, prio=1,
           kvA=1, kvB=5, kvC=8, wopre=15, spin=200000)
for a in sys.argv[2:]:
    k, v = a.split("=")
    CFG[k] = eval(v)

MFMA = "v_mfma_f32_32x32x16_bf16"
CSC = math.log2(math.e) / math.sqrt(128.0)
def f2u(x): return struct.unpack("<I", struct.pack("<f", x))[0]
THR = 1024.0

KV_SLOT, KV_N, V_OFF, K_OFF = 17152, 5, 0, 8704
def kv_phys(e): return ((e + 2) % KV_N) * KV_SLOT
QS_BASE, QS_SLOT, QX, QW = 74752, 29696, 0, 12288
def qs(it): return QS_BASE + ((it + 2) % 3) * QS_SLOT
SYNC = 85760
CH = 16384
WS_O = 0
WS_P = 16 << 20
WS_F1 = 32 << 20
WS_F2 = WS_F1 + 65536
WS_STAMP = 128 << 20
NST = 24

sW = 3
sX, sWQ, sK, sV, sWS, sWO, sOUT = 20, 24, 28, 32, 36, 40, 44
sB, sKQ, sCT, sH0 = 48, 49, 50, 51
sT0, sT1, sT2, sT3 = 52, 53, 54, 55
sI, sRr = 56, 57
sCnt, sSlot, sDelta = 58, 59, 60
sCX, sCW, sU1, sU2 = 61, 62, 63, 64
sJ, sR, sCur = 61, 62, 63
sTab, sTab2 = 64, 66
sThr, sCs = 68, 70
sFL = 72
sSt = 76

def srd(A, d, lo, hi, n):
    A(f"s_mov_b32 s{d}, {lo}\ns_mov_b32 s{d+1}, {hi}\ns_mov_b32 s{d+2}, {n}\ns_mov_b32 s{d+3}, 0x20000")
def srd_off(A, d, p, soff, n):
    A(f"s_add_u32 s{d}, s{p}, s{soff}\ns_addc_u32 s{d+1}, s{p+1}, 0\ns_mov_b32 s{d+2}, {n}\ns_mov_b32 s{d+3}, 0x20000")

def stamp(A, i):
    if CFG["stamps"]: A(f"s_memrealtime s[{sSt+2*i}:{sSt+2*i+1}]")
def stamp_flush(A, n, slot0):
    if not CFG["stamps"]: return
    A("s_waitcnt lgkmcnt(0) vmcnt(0)")
    A(f"s_mov_b32 s{sT0}, {WS_STAMP}")
    srd_off(A, sOUT, 18, sT0, 0x100000)
    A(f"s_mul_i32 s{sT0}, s2, {NST*8}\ns_add_u32 s{sT0}, s{sT0}, {slot0*8}")
    A(f"s_mov_b64 exec, 1\nv_mov_b32 v1, s{sT0}")
    for i in range(n):
        A(f"v_mov_b32 v2, s{sSt+2*i}\nv_mov_b32 v3, s{sSt+2*i+1}")
        A(f"buffer_store_dwordx2 v[2:3], v1, s[{sOUT}:{sOUT+3}], 0 offen offset:{8*i}")
        A("s_nop 1")
    A("s_mov_b64 exec, -1")

def barriers(A, n, tag):
    if n <= 4:
        for _ in range(n): A("s_barrier")
    else:
        A(f"s_mov_b32 s{sCnt}, 0")
        A.label(tag)
        A(f"s_barrier\ns_add_u32 s{sCnt}, s{sCnt}, 1\ns_cmp_lt_u32 s{sCnt}, {n}\ns_cbranch_scc1 {tag}")

def poll16(A, tag, vaddr, vd, mask_s, first_issued=False, srdn=sFL, soff="0"):
    A(f"s_mov_b32 s{sT3}, 0")
    if first_issued: A(f"s_branch {tag}_chk")
    A.label(tag)
    A(f"buffer_load_dword v{vd}, v{vaddr}, s[{srdn}:{srdn+3}], {soff} offen sc1")
    A.label(f"{tag}_chk")
    A(f"""s_waitcnt vmcnt(0)
    v_cmp_eq_u32 vcc, 1, v{vd}
    s_add_u32 s{sT3}, s{sT3}, 1
    s_and_b32 s{sT2}, vcc_lo, {mask_s}
    s_cmp_ge_u32 s{sT3}, {CFG['spin']}
    s_cbranch_scc1 {tag}_done
    s_cmp_eq_u32 s{sT2}, {mask_s}
    s_cbranch_scc0 {tag}""")
    A.label(f"{tag}_done")

def chunk_plan():
    F = CFG["F"]
    n1 = 30 - F
    inround = {}
    nxt = 4
    e = F + 4
    while e <= 29:
        inround[e] = [nxt, nxt + 1]; nxt += 2; e += 2
    n_iss = nxt
    sig = {j: 6 + (j % 4) for j in range(n_iss)}
    free = []
    for j in range(n_iss - 4, n_iss):
        if j <= n1 - 2: free.append((sig[j], 0))
    free += [(s, 0) for s in (0, 1, 2, 4)]
    pend = [j for j in range(n_iss - 4, n_iss) if j > n1 - 2]
    need = {}
    j = n_iss
    npre_end = 16 + CFG["NPRE2"]
    while j < 32:
        if j == npre_end: free.insert(0, (3, 0))
        if not free:
            k = pend.pop(0); free.append((sig[k], k + 1))
        s, p = free.pop(0)
        sig[j] = s; need[j] = p; pend.append(j)
        j += 1
    assert all(need[j] <= 16 for j in range(n_iss, npre_end))
    return n1, n_iss, inround, sig, need

def kernel(A):
    L = NAME + "_kernel"
    F, DR = CFG["F"], CFG["DR"]
    n1, n_iss, inround, sig, need = chunk_plan()
    A(f".globl {L}\n.p2align 8\n.type {L},@function")
    A.label(L)
    A(f"s_cmp_lt_u32 s2, 256\ns_cbranch_scc1 K_go\ns_endpgm")
    A.label("K_go")
    A("s_load_dwordx16 s[4:19], s[0:1], 0")
    stamp(A, 0)
    A(f"""s_and_b32 s{sT0}, s2, 7
    s_lshr_b32 s{sKQ}, s{sT0}, 1
    s_and_b32 s{sT0}, s{sT0}, 1
    s_lshr_b32 s{sT1}, s2, 3
    s_and_b32 s{sCT}, s{sT1}, 3
    s_lshr_b32 s{sT1}, s{sT1}, 2
    s_lshl_b32 s{sB}, s{sT0}, 3
    s_add_u32 s{sB}, s{sB}, s{sT1}
    s_lshl_b32 s{sH0}, s{sKQ}, 3
    s_lshl_b32 s{sT0}, s{sCT}, 1
    s_add_u32 s{sH0}, s{sH0}, s{sT0}
    v_lshrrev_b32 v1, 6, v0
    v_and_b32 v0, 63, v0
    v_readfirstlane_b32 s{sW}, v1""")
    NT = " nt" if CFG["nt"] else ""
    A(f"s_cmp_eq_u32 s{sW}, 7\ns_cbranch_scc0 K_notld")

    vW, vX, vK, vV, vWo, vOo, vFa, vFd, vSy = 8, 12, 16, 20, 24, 34, 35, 36, 37
    if CFG["prio"]: A("s_setprio 3")
    A(f"""v_lshrrev_b32 v1, 3, v0
    v_and_b32 v2, 7, v0
    v_lshrrev_b32 v3, 4, v0
    v_xor_b32 v4, v2, v3
    v_xor_b32 v5, 4, v4
    v_mul_u32_u24 v1, 1280, v1
    v_lshl_add_u32 v{vX}, v4, 4, v1
    v_lshl_add_u32 v{vX+1}, v5, 4, v1
    v_add_u32 v{vX+2}, {2*10240-2048}, v{vX}
    v_add_u32 v{vX+3}, {3*10240-3072}, v{vX+1}
    v_add_u32 v{vX+1}, {10240-1024}, v{vX+1}
    v_and_b32 v2, 15, v0
    v_lshlrev_b32 v4, 17, v3
    v_lshl_add_u32 v{vW}, v2, 4, v4""")
    for j in range(1, 4): A(f"v_add_u32 v{vW+j}, {j*(8192-1088)}, v{vW}")
    A(f"""s_and_b32 s{sT0}, s{sB}, 7
    s_lshr_b32 s{sT1}, s{sT0}, 2
    s_add_u32 s{sT0}, s{sT0}, s{sT1}
    s_mul_i32 s{sT1}, s{sCT}, 5
    s_lshr_b32 s{sT1}, s{sT1}, 1
    s_add_u32 s{sCX}, s{sT0}, s{sT1}
    s_sub_u32 s{sT0}, s{sCX}, 10
    s_cmp_ge_u32 s{sCX}, 10
    s_cselect_b32 s{sCX}, s{sT0}, s{sCX}""")
    if not CFG["rot"]: A(f"s_mov_b32 s{sCX}, 0")
    A(f"s_lshl_b32 s{sCW}, s{sCX}, 19\ns_lshl_b32 s{sCX}, s{sCX}, 7")
    A(f"s_mul_i32 s{sT0}, s{sB}, 122880\ns_lshl_b32 s{sT1}, s{sH0}, 8\ns_sub_u32 s{sT2}, 5242880, s{sT1}")
    A("s_waitcnt lgkmcnt(0)")
    srd_off(A, sX, 4, sT0, 122880)
    srd_off(A, sWQ, 10, sT1, f"s{sT2}")
    def issue_X(it):
        base = qs(it) + QX
        for a in range(3):
            A(f"s_mov_b32 m0, {base + a*4096}")
            A(f"s_add_u32 s{sT0}, s{sCX}, {a*40960}")
            for n in range(4):
                A.vm(f"buffer_load_dwordx4 v{vX+n}, s[{sX}:{sX+3}], s{sT0} offen offset:{n*1024} lds", ("XW", it))
        A(f"s_add_u32 s{sCX}, s{sCX}, 128\ns_cmp_eq_u32 s{sCX}, 1280\ns_cselect_b32 s{sCX}, 0, s{sCX}")
    def issue_W(it):
        base = qs(it) + QW
        r = 1 if it >= 10 else 0
        for a in range(4):
            A(f"s_mov_b32 m0, {base + a*4352}")
            A(f"s_add_u32 s{sT0}, s{sCW}, {a*32768 + r*256}")
            for n in range(4):
                A.vm(f"buffer_load_dwordx4 v{vW+n}, s[{sWQ}:{sWQ+3}], s{sT0} offen offset:{n*1088} lds", ("XW", it))
        A(f"s_add_u32 s{sCW}, s{sCW}, {64*8192}\ns_cmp_eq_u32 s{sCW}, 5242880\ns_cselect_b32 s{sCW}, 0, s{sCW}")
    def issue_K(t):
        base = kv_phys(t - 2) + K_OFF
        for a in range(2):
            A(f"s_mov_b32 m0, {base + a*4224}\ns_mov_b32 s{sT0}, {t*8192 + a*1024}")
            for n in range(4):
                A.vm(f"buffer_load_dwordx4 v{vK+n}, s[{sK}:{sK+3}], s{sT0} offen offset:{n*1056}{NT} lds", ("K", t))
    def issue_V(t):
        base = kv_phys(t) + V_OFF
        for a in range(2):
            A(f"s_mov_b32 m0, {base + a*4352}\ns_mov_b32 s{sT0}, {t*8192 + a*1024}")
            for n in range(4):
                A.vm(f"buffer_load_dwordx4 v{vV+n}, s[{sV}:{sV+3}], s{sT0} offen offset:{n*1088}{NT} lds", ("V", t))
    issue_X(0); issue_W(0); issue_X(1); issue_W(1)
    A(f"""v_lshrrev_b32 v1, 5, v0
    v_xor_b32 v1, v2, v1
    v_lshlrev_b32 v4, 11, v3
    v_add_u32 v4, 4096, v4
    v_lshl_add_u32 v{vK}, v1, 4, v4
    v_lshl_add_u32 v{vV}, v2, 4, v4""")
    for j in range(1, 4):
        A(f"v_subrev_u32 v{vK+j}, {j*800}, v{vK}\nv_subrev_u32 v{vV+j}, {j*832}, v{vV}")
    A(f"s_lshl_b32 s{sT3}, s{sB}, 5\ns_add_u32 s{sT3}, s{sT3}, s{sH0}\ns_lshl_b32 s{sT3}, s{sT3}, 17")
    for d, p in ((sK, 6), (sV, 8)):
        srd_off(A, d, p, sT3, 262144 + 4096)
        A(f"s_sub_u32 s{d}, s{d}, 4096\ns_subb_u32 s{d+1}, s{d+1}, 0")
    def late_setup():
        for n in range(10):
            A(f"v_add_u32 v1, {64*n}, v0\nv_mul_u32_u24 v2, 3277, v1\nv_lshrrev_b32 v2, 16, v2")
            A(f"v_mul_u32_u24 v3, 20, v2\nv_sub_u32 v3, v1, v3\nv_mul_u32_u24 v2, 1280, v2\nv_lshl_add_u32 v2, v3, 4, v2")
            A(f"v_subrev_u32 v{vWo+n}, {(n%4)*1024}, v2")
        A(f"v_lshlrev_b32 v{vOo}, 4, v0\nv_lshlrev_b32 v{vFa}, 2, v0\nv_mov_b32 v{vSy}, {SYNC}")
        A(f"s_mul_i32 s{sT0}, s{sKQ}, {1024*1280}\ns_mul_i32 s{sT1}, s{sCT}, 320\ns_add_u32 s{sT0}, s{sT0}, s{sT1}\ns_sub_u32 s{sT1}, 5242880, s{sT0}")
        srd_off(A, sWO, 12, sT0, f"s{sT1}")
        A(f"s_lshl_b32 s{sT2}, s{sB}, 5\ns_lshl_b32 s{sT3}, s{sKQ}, 3\ns_add_u32 s{sT2}, s{sT2}, s{sT3}\ns_mul_i32 s{sT2}, s{sT2}, 24576")
        srd_off(A, sWS, 18, sT2, 8 * 24576)
        A(f"s_lshl_b32 s{sT0}, s{sB}, 2\ns_add_u32 s{sT0}, s{sT0}, s{sKQ}\ns_lshl_b32 s{sT0}, s{sT0}, 8\ns_add_u32 s{sT0}, s{sT0}, {WS_F1 + 128}")
        srd_off(A, sFL, 18, sT0, 64)
        A(f"s_and_b32 s{sT0}, s{sB}, 7\ns_lshl_b32 s{sT0}, s{sT0}, 1\ns_lshl_b32 s{sT1}, s{sCT}, 2\ns_add_u32 s{sT0}, s{sT0}, s{sT1}")
        A(f"s_and_b32 s{sU1}, s{sT0}, 15\ns_mov_b32 s{sU2}, s{sU1}")
    def chunk_u(cnt, r, mul):
        A(f"""s_lshr_b32 s{sT1}, s{cnt}, 2
        s_and_b32 s{sT0}, s{cnt}, 3
        s_lshl3_add_u32 s{sT0}, s{sT1}, s{sT0}""")
        if r: A(f"s_add_u32 s{sT0}, s{sT0}, 4")
        A(f"s_mul_i32 s{sT0}, s{sT0}, {mul}\ns_add_u32 s{cnt}, s{cnt}, 1\ns_and_b32 s{cnt}, s{cnt}, 15")
    def issue_wo(j):
        chunk_u(sU1, j >= 16, 40960)
        for n in range(10):
            if n % 4 == 0: A(f"s_mov_b32 m0, {sig[j]*CH + n*1024}\ns_nop 0")
            A.vm(f"buffer_load_dwordx4 v{vWo+n}, s[{sWO}:{sWO+3}], s{sT0} offen offset:{(n%4)*1024} lds", ("C", j))
    def issue_O(j):
        chunk_u(sU2, j >= 16, 6144)
        for n in range(6):
            if n % 4 == 0:
                A(f"s_mov_b32 m0, {sig[j]*CH + 10240 + n*1024}")
                A(f"s_add_u32 s{sT0}, s{sT0}, 4096" if n else "s_nop 0")
            A.vm(f"buffer_load_dwordx4 v{vOo}, s[{sWS}:{sWS+3}], s{sT0} offen offset:{(n%4)*1024} sc1 lds", ("C", j))
    def publish(n):
        A(f"v_mov_b32 v1, {n}\nds_write_b32 v{vSy}, v1")
    npoll = [0]
    def wait_P(n):
        npoll[0] += 1
        t = f"L_wp{npoll[0]}"
        A.label(t)
        A(f"""ds_read_b128 v[4:7], v{vSy} offset:16
        s_waitcnt lgkmcnt(0)
        v_min_u32 v4, v4, v5
        v_min3_u32 v4, v4, v6, v7
        s_nop 0
        v_readfirstlane_b32 s{sT1}, v4
        s_cmp_ge_u32 s{sT1}, {n}
        s_cbranch_scc0 {t}""")
    kvb = {CFG["kvA"]: [("K", 0), ("K", 1), ("V", 0), ("K", 2)], CFG["kvB"]: [("V", 1), ("K", 3), ("V", 3), ("V", 4)]}
    kvb.setdefault(CFG["kvC"], []); kvb[CFG["kvC"]] = kvb[CFG["kvC"]] + [("K", 4), ("V", 2)]
    assert CFG["kvC"] >= 8
    for j in range(10):
        A.wait_vm(("XW", j))
        A("s_barrier")
        if j == 0: stamp(A, 1)
        if j + 2 <= 9: issue_X(j + 2); issue_W(j + 2)
        for kind, t in kvb.get(j, []):
            (issue_K if kind == "K" else issue_V)(t)
        if j == 2: late_setup()
    w2_issue = {-2: [10, 11, 12], 3: [13, 14], 5: [15], 7: [16, 17], 9: [18], 11: [19]}
    w2_use = {1: 10, 2: 11, 3: 12, 5: 13, 6: 14, 7: 15, 9: 16, 10: 17, 11: 18, 13: 19}
    for e in range(-2, 32):
        if e + 2 <= 31: A.wait_vm(("K", e + 2))
        if e >= 0: A.wait_vm(("V", e))
        if e in w2_use: A.wait_vm(("XW", w2_use[e]))
        if F + 2 <= e: A.wait_vm(("C", e - F - 2))
        if e == 31:
            A.wait_vm(("C", n_iss - 1)); publish(n_iss); A("s_waitcnt lgkmcnt(0)")
        A("s_barrier")
        if e == -2: stamp(A, 2)
        if e == 0: stamp(A, 3)
        if e == 16: stamp(A, 4)
        if e == 31: stamp(A, 5)
        if e >= 0 and e % 2 == 0:
            for kind, t in (("V", e + 3), ("K", e + 5), ("V", e + 4), ("K", e + 6)):
                if t > 31 or (kind == "V" and t <= 4): continue
                if CFG.get("noload"): continue
                (issue_K if kind == "K" else issue_V)(t)
        for it in w2_issue.get(e, []): issue_W(it)
        if e == CFG["wopre"]:
            for j in range(4): issue_wo(j)
        if e == F:
            for j in range(4): issue_O(j)
        for j in inround.get(e, []): issue_wo(j); issue_O(j)
    pub = n_iss
    def ensure_pub(n):
        nonlocal pub
        if pub < n:
            A.wait_vm(("C", n - 1)); publish(n); pub = n
    npre_end = 16 + CFG["NPRE2"]
    lastP = 0
    for j in range(n_iss, npre_end):
        if need[j] > lastP:
            ensure_pub(min(need[j], 16)); wait_P(need[j]); lastP = need[j]
        issue_wo(j)
        if j < 16: issue_O(j)
        ensure_pub(min(j - 1, 16))
    ensure_pub(16)
    stamp(A, 6)
    poll16(A, "L_poll", vFa, vFd, "0x7777")
    A.vm_q = []
    stamp(A, 7)
    for j in range(16, npre_end):
        issue_O(j)
        if j - 5 >= 16: ensure_pub(j - 4)
    for j in range(npre_end, 32):
        if need[j] > lastP:
            ensure_pub(need[j]); wait_P(need[j]); lastP = need[j]
        issue_wo(j); issue_O(j)
        for k in range(pub + 1, j): ensure_pub(k)
    for k in range(pub + 1, 33): ensure_pub(k)
    stamp(A, 8)
    stamp_flush(A, 9, 0)
    A("s_endpgm")
    A.vm_q = []

    A.label("K_notld")
    vKa, vVa, vL, vTs, vD, vD2, vSt, vWa, vXa, vTmp = 2, 3, 4, 5, 7, 8, 9, 10, 11, 15
    vT, vP, vQ, vO, vS, vC, vKf, vVf = 16, 24, 32, 64, 128, 160, 176, 208
    FA = [208, 224]; FB = [240, 244]
    vHi, vN, vG, vR, vCp = 248, 249, 250, 251, 252
    A(f"s_and_b32 s{sI}, s{sW}, 3\ns_lshr_b32 s{sRr}, s{sW}, 2")
    A(f"""v_lshrrev_b32 v{vHi}, 5, v0
    v_and_b32 v{vN}, 31, v0
    v_bfe_u32 v{vG}, v0, 4, 1
    v_bfe_u32 v{vR}, v0, 2, 2
    v_and_b32 v1, 1, v0
    v_bfe_u32 v15, v0, 1, 1
    v_lshl_add_u32 v{vCp}, v1, 1, v15
    v_lshlrev_b32 v{vCp}, 3, v{vCp}
    v_lshl_add_u32 v{vCp}, v{vG}, 5, v{vCp}
    v_lshlrev_b32 v{vSt}, 4, v0""")
    A(f"s_cmp_eq_u32 s{sW}, 3\ns_cbranch_scc1 K_w3")
    A(f"""s_cmp_eq_u32 s{sRr}, 0
    s_cselect_b32 s{sT1}, {qs(0) - QS_BASE}, 0
    s_lshl_b32 s{sT0}, s{sI}, 12
    s_add_u32 s{sT0}, s{sT0}, s{sT1}
    s_add_u32 s{sT0}, s{sT0}, {QS_BASE + QX}
    s_add_u32 s{sT1}, s{sT1}, {QS_BASE + QW}
    v_bfe_u32 v1, v0, 1, 3
    v_xor_b32 v1, v1, v{vHi}
    v_lshlrev_b32 v1, 4, v1
    v_lshl_add_u32 v1, v{vN}, 7, v1""")
    for ks in range(4):
        A(f"v_xor_b32 v15, {ks<<5}, v1\nv_add_u32 v{vXa+ks}, s{sT0}, v15")
    A(f"""v_lshl_add_u32 v1, v{vHi}, 3, v{vR}
    v_mul_u32_u24 v1, 1088, v1
    v_add3_u32 v{vWa}, v1, v{vCp}, s{sT1}""")
    A(f"""s_cmp_eq_u32 s{sRr}, 0
    s_mov_b32 s{sT0}, {kv_phys(14) + K_OFF}
    s_cselect_b32 s{sT0}, {kv_phys(-2) + K_OFF}, s{sT0}
    s_mov_b32 s{sSlot}, {kv_phys(16)}
    s_cselect_b32 s{sSlot}, {kv_phys(0)}, s{sSlot}
    v_and_b32 v1, 7, v0
    v_mul_u32_u24 v1, 1056, v1
    v_bfe_u32 v15, v0, 3, 2
    v_lshl_add_u32 v1, v15, 8, v1
    v_xor_b32 v15, v{vHi}, v{vG}
    v_lshl_add_u32 v1, v15, 4, v1
    v_add_u32 v{vKa}, s{sT0}, v1
    v_lshl_add_u32 v1, v{vHi}, 2, v{vR}
    v_mul_u32_u24 v1, 1088, v1
    v_add3_u32 v{vVa}, v1, v{vCp}, s{sSlot}""")
    assert kv_phys(-1) - kv_phys(-2) == KV_SLOT and kv_phys(0) - kv_phys(-1) == KV_SLOT
    assert kv_phys(15) - kv_phys(14) == KV_SLOT and kv_phys(16) - kv_phys(15) == KV_SLOT
    A(f"s_mov_b32 s{sCs}, {f2u(CSC):#x}\ns_mov_b32 s{sCs+1}, {f2u(CSC):#x}\ns_mov_b32 s{sThr}, {f2u(THR):#x}")
    for i in range(64): A(f"v_mov_b32 v{vO+i}, 0")
    for i in range(16): A(f"v_mov_b32 v{FA[1]+i}, 0")
    for i in range(4): A(f"v_mov_b32 v{FB[1]+i}, 0")
    A("s_waitcnt lgkmcnt(0)")
    A(f"s_lshl_b32 s{sT0}, s{sB}, 5\ns_add_u32 s{sT0}, s{sT0}, s{sH0}\ns_add_u32 s{sT0}, s{sT0}, s{sRr}")
    A(f"s_mul_i32 s{sT0}, s{sT0}, 24576\ns_lshl_b32 s{sT1}, s{sI}, 11\ns_add_u32 s{sT0}, s{sT0}, s{sT1}")
    srd_off(A, sWS, 18, sT0, 24576)
    A(f"""s_lshl_b32 s{sT0}, s{sB}, 2
    s_add_u32 s{sT0}, s{sT0}, s{sKQ}
    s_lshl1_add_u32 s{sT0}, s{sT0}, s{sRr}
    s_lshl_b32 s{sT0}, s{sT0}, 7
    s_lshl2_add_u32 s{sT1}, s{sCT}, s{sI}
    s_lshl2_add_u32 s{sT0}, s{sT1}, s{sT0}
    s_add_u32 s{sT0}, s{sT0}, {WS_F1}""")
    srd_off(A, sFL, 18, sT0, 4)
    A(f"s_cmp_eq_u32 s{sRr}, 0\ns_cbranch_scc0 K_bgrp")

    def gemm4(woff, xsrc, prevB):
        def rd(ks, Fi):
            kind, val = xsrc(ks)
            if kind == "lds": A.ds(f"ds_read_b128 {vr(FB[Fi],4)}, v{vXa+ks} offset:{val}", ("F", Fi))
            for t in range(4):
                for p in range(2):
                    A.ds(f"ds_read_b64_tr_b16 {vr(FA[Fi]+4*t+2*p,2)}, v{vWa} offset:{woff + p*4352 + ks*256 + 64*t}", ("F", Fi))
            return FB[Fi] if kind == "lds" else val
        def mm(Fi, b):
            for t in range(4):
                A(f"{MFMA} {vr(vO+16*t,16)}, {vr(FA[Fi]+4*t,4)}, {vr(b,4)}, {vr(vO+16*t,16)}")
        b0 = rd(0, 0); mm(1, prevB)
        b1 = rd(1, 1); A.wait_ds(("F", 0)); mm(0, b0)
        b0 = rd(2, 0); A.wait_ds(("F", 1)); mm(1, b1)
        b1 = rd(3, 1)
        return b0, b1, mm
    A(f"s_mov_b32 s{sCnt}, 0\ns_mov_b32 s{sT2}, 2")
    A.label("A_q")
    A("s_barrier")
    b0, b1, mm = gemm4(0, lambda ks: ("lds", 0), FB[1])
    A(f"""s_add_u32 s{sT2}, s{sT2}, 1
    s_mov_b32 s{sDelta}, {QS_SLOT}
    s_cmp_eq_u32 s{sT2}, 3
    s_cselect_b32 s{sDelta}, {-2*QS_SLOT & 0xffffffff:#x}, s{sDelta}
    s_cselect_b32 s{sT2}, 0, s{sT2}""")
    A.wait_ds(("F", 0)); mm(0, b0)
    A(f"v_add_u32 v{vWa}, s{sDelta}, v{vWa}")
    for ks in range(4): A(f"v_add_u32 v{vXa+ks}, s{sDelta}, v{vXa+ks}")
    A.wait_ds()
    A(f"s_add_u32 s{sCnt}, s{sCnt}, 1\ns_cmp_lt_u32 s{sCnt}, 10\ns_cbranch_scc1 A_q")
    A("s_branch K_att")
    A.label("K_bgrp")
    def xreg(it, ks): return (16 + 16 * it if it < 3 else 128 + 16 * (it - 3)) + 4 * ks
    for it in range(8):
        A("s_barrier")
        for ks in range(4):
            A(f"ds_read_b128 {vr(xreg(it,ks),4)}, v{vXa+ks} offset:{qs(it) - QS_BASE}")
        A("s_waitcnt lgkmcnt(0)")
    barriers(A, 5, "B_i0")
    prevB = FB[1]
    for e in range(1, 14):
        A("s_barrier")
        if e in w2_use:
            it = w2_use[e]; c = it - 10
            src = (lambda ks, c=c: ("reg", xreg(c, ks))) if c < 8 else (lambda ks, c=c: ("lds", qs(c) - QS_BASE))
            b0, b1, mm = gemm4(qs(it) - QS_BASE, src, prevB)
            A.wait_ds(("F", 0)); mm(0, b0)
            A.wait_ds()
            prevB = b1
    assert prevB == FB[1]
    if CFG["prio"]: A("s_setprio 1")

    A.label("K_att")
    def kreads(lo=0, hi=8): return [f"ds_read_b128 {vr(vKf+4*ks,4)}, v{vKa} offset:{32*ks}" for ks in range(lo, hi)]
    def qk(ks, S, c0): return f"{MFMA} {vr(S,16)}, {vr(vKf+4*ks,4)}, {vr(vQ+4*ks,4)}, " + (c0 if ks == 0 else vr(S,16))
    A("s_barrier")
    for x in kreads(): A(x)
    mm(1, FB[1])
    A(f"v_add_u32 v{vKa}, {KV_SLOT}, v{vKa}\nv_mov_b32 v{vL}, 0\ns_nop 7\ns_nop 1")
    for t in range(4):
        if t == 3: A("s_nop 1")
        for j in range(8):
            A(f"v_pk_mul_f32 {vr(vO+16*t+2*j,2)}, {vr(vO+16*t+2*j,2)}, s[{sCs}:{sCs+1}]")
        for j in range(8):
            A(f"v_cvt_pk_bf16_f32 v{vQ+8*t+j}, v{vO+16*t+2*j}, v{vO+16*t+2*j+1}")
    A("s_waitcnt lgkmcnt(0)\ns_barrier")
    kr = kreads()
    for ks in range(8):
        A(qk(ks, vS, "0"))
        for i in range(8): A(f"v_mov_b32 v{vO+8*ks+i}, 0")
        if ks >= 1: A(kr[ks - 1])
    A(kr[7])
    A(f"v_add_u32 v{vKa}, {KV_SLOT}, v{vKa}\ns_nop 7\ns_nop 1")
    A(f"v_max3_f32 v{vD}, v{vS}, v{vS+1}, v{vS+2}")
    for j in range(6): A(f"v_max3_f32 v{vD}, v{vD}, v{vS+3+2*j}, v{vS+4+2*j}")
    A(f"""v_max_f32 v{vD}, v{vD}, v{vS+15}
    v_mov_b32 v{vD2}, v{vD}
    s_nop 1
    v_permlane32_swap_b32 v{vD2}, v{vD}
    s_nop 1
    v_max_f32 v{vD}, v{vD}, v{vD2}""")
    for i in range(16): A(f"v_sub_f32 v{vS+i}, v{vS+i}, v{vD}")
    for i in range(16): A(f"v_sub_f32 v{vC+i}, 0, v{vD}")
    def E(S, i): return f"v_exp_f32 v{vT+(i&7)}, v{S+i}"
    def Ad(i):
        h = i >> 3
        if i & 7 == 1: return f"v_add_f32 v{vTs+h}, v{vT+((i-1)&7)}, v{vT+(i&7)}"
        return f"v_add_f32 v{vTs+h}, v{vTs+h}, v{vT+(i&7)}"
    def Cv(j): return f"v_cvt_pk_bf16_f32 v{vP+j}, v{vT+((2*j)&7)}, v{vT+((2*j+1)&7)}"
    def Vr(m, dt, p): return f"ds_read_b64_tr_b16 {vr(vVf+16*m+4*dt+2*p,2)}, v{vVa} offset:{(2*m+p)*256+64*dt}"
    for x in (E(vS, 0), E(vS, 1), E(vS, 2), E(vS, 3), Ad(1), Cv(0)): A(x)
    A(f"s_mov_b32 s{sCnt}, 0\ns_waitcnt lgkmcnt(0)")
    A.label("K_loop")
    for half in range(2):
        Sc, Sn = vS + 16 * half, vS + 16 * (1 - half)
        vq = [Vr(m, dt, p) for m in range(2) for dt in range(4) for p in range(2)]
        kq_ = kreads()
        V = lambda: ("ds", vq.pop(0))
        K = lambda: ("ds", kq_.pop(0))
        cmp_ = lambda h: f"v_cmp_lt_f32 vcc, s{sThr}, v{vTs+h}"
        br = lambda h: ("br", h)
        lad = lambda h: f"v_add_f32 v{vL}, v{vL}, v{vTs+h}"
        ring = [f"s_add_u32 s{sSlot}, s{sSlot}, {KV_SLOT}", f"s_mov_b32 s{sDelta}, {KV_SLOT}", f"s_cmp_eq_u32 s{sSlot}, {KV_N*KV_SLOT}",
                f"s_cselect_b32 s{sDelta}, {-(KV_N-1)*KV_SLOT & 0xffffffff:#x}, s{sDelta}", f"s_cselect_b32 s{sSlot}, 0, s{sSlot}"]
        gaps = [
            [E(Sc, 4), V(), Ad(2), V(), Ad(3)],
            [E(Sc, 5), V(), Cv(1), V(), Ad(4)],
            [E(Sc, 6), V(), Ad(5), V(), Cv(2)],
            [E(Sc, 7), V(), Ad(6), V(), ring[0]],
            [Ad(7), E(Sc, 8), Cv(3), cmp_(0), V()],
            [E(Sc, 9), V(), br(0), lad(0), V()],
            [E(Sc, 10), Ad(9), V(), Cv(4), V()],
            [E(Sc, 11), Ad(10), V(), V(), ("wv", 0)],
            [E(Sc, 12), Ad(11), V(), Cv(5), ring[1]],
            [E(Sc, 13), Ad(12), E(Sc, 14), Ad(13)],
            [E(Sc, 15), Cv(6), Ad(14), K(), K()],
            [Ad(15), Cv(7), cmp_(1), K(), K(), br(1), ("wv", 1)],
            [lad(1), K(), K(), ring[2], ring[3], ring[4]],
            [K(), K(), f"v_add_u32 v{vVa}, s{sDelta}, v{vVa}", f"v_add_u32 v{vKa}, s{sDelta}, v{vKa}"],
            [E(Sn, 0), E(Sn, 1), E(Sn, 2)],
            [E(Sn, 3), Ad(1), Cv(0)],
        ]
        mf = [qk(ks, Sn, vr(vC, 16)) for ks in range(8)] + \
             [f"{MFMA} {vr(vO+16*dt,16)}, {vr(vVf+16*m+4*dt,4)}, {vr(vP+4*m,4)}, {vr(vO+16*dt,16)}" for m in range(2) for dt in range(4)]
        A("s_barrier")
        nds = 0
        for g in range(16):
            A(mf[g])
            for x in gaps[g]:
                if isinstance(x, str): A(x)
                elif x[0] == "ds":
                    A.ds(x[1], "V0" if nds < 8 else ("V1" if nds < 16 else "K")); nds += 1
                elif x[0] == "wv": A.wait_ds(f"V{x[1]}")
                elif x[0] == "br":
                    A(f"s_cbranch_vccnz K_rare{half}{x[1]}"); A.label(f"K_back{half}{x[1]}")
        if half == 1: A(f"s_add_u32 s{sCnt}, s{sCnt}, 1\ns_cmp_lt_u32 s{sCnt}, 8")
        A.wait_ds()
        assert not vq and not kq_
    A("s_cbranch_scc1 K_loop")
    A(f"s_cmp_eq_u32 s{sRr}, 0\ns_cbranch_scc0 K_fin\ns_barrier")
    A.label("K_fin")
    A(f"v_mov_b32 v{vD}, v{vL}\ns_nop 1\nv_permlane32_swap_b32 v{vD}, v{vL}\ns_nop 1")
    A(f"v_add_f32 v{vL}, v{vL}, v{vD}\nv_rcp_f32 v{vL}, v{vL}\ns_nop 1\nv_mov_b32 v{vL+1}, v{vL}\ns_nop 3")
    for dt in range(4):
        for j in range(8): A(f"v_pk_mul_f32 {vr(vO+16*dt+2*j,2)}, {vr(vO+16*dt+2*j,2)}, {vr(vL,2)}")
        for j in range(8): A(f"v_cvt_pk_bf16_f32 v{vKf+8*dt+j}, v{vO+16*dt+2*j}, v{vO+16*dt+2*j+1}")
        A(f"s_mov_b32 s{sT0}, {dt*6144}")
        for m in range(2):
            A(f"buffer_store_dwordx4 {vr(vKf+8*dt+4*m,4)}, v{vSt}, s[{sWS}:{sWS+3}], s{sT0} offen offset:{m*1024} sc1")
    A(f"v_mov_b32 v{vD}, 1\nv_mov_b32 v{vD2}, 0")
    A(f"s_cmp_eq_u32 s{sRr}, 0\ns_cbranch_scc1 K_a2")
    stamp(A, 0)
    A(f"s_waitcnt vmcnt(0)\ns_mov_b64 exec, 1\nbuffer_store_dword v{vD}, v{vD2}, s[{sFL}:{sFL+3}], 0 offen sc1")
    if CFG["stamps"]:
        stamp(A, 1)
        A(f"s_cmp_eq_u32 s{sI}, 0\ns_cbranch_scc0 K_bend")
        stamp_flush(A, 2, 9)
        A.label("K_bend")
    A("s_endpgm")
    for half in range(2):
        Sc, Sn = vS + 16 * half, vS + 16 * (1 - half)
        for h in range(2):
            A.label(f"K_rare{half}{h}")
            el = list(range(8 * h, 16))
            A(f"v_max3_f32 v{vD}, v{Sc+el[0]}, v{Sc+el[1]}, 0")
            for i in range(2, len(el), 2): A(f"v_max3_f32 v{vD}, v{vD}, v{Sc+el[i]}, v{Sc+el[i+1]}")
            A(f"""v_mov_b32 v{vD2}, v{vD}
            s_nop 1
            v_permlane32_swap_b32 v{vD2}, v{vD}
            s_nop 1
            v_max_f32 v{vD}, v{vD}, v{vD2}
            v_sub_f32 v{vD2}, 0, v{vD}
            v_exp_f32 v{vD2}, v{vD2}
            s_nop 7
            s_nop 7""")
            for i in el: A(f"v_sub_f32 v{Sc+i}, v{Sc+i}, v{vD}")
            for i in range(16): A(f"v_sub_f32 v{vC+i}, v{vC+i}, v{vD}")
            for i in range(16): A(f"v_sub_f32 v{Sn+i}, v{Sn+i}, v{vD}")
            A(f"v_mul_f32 v{vL}, v{vD2}, v{vL}")
            for i in range(64): A(f"v_mul_f32 v{vO+i}, v{vD2}, v{vO+i}")
            for i in range(8 * h, 8 * h + 8, 2):
                A(E(Sc, i)); A(E(Sc, i + 1)); A("s_nop 0")
                if i & 7: A(Ad(i))
                A(Ad(i + 1)); A(Cv(i // 2))
            if h == 0: A(E(Sc, 8)); A(E(Sc, 9))
            A(f"s_nop 1\ns_branch K_back{half}{h}")

    A.label("K_w3")
    vFa3, vFd3 = 2, 3
    A("s_waitcnt lgkmcnt(0)")
    srd(A, sFL, "s18", "s19", WS_F2 + 65536)
    srd(A, sOUT, "s16", "s17", 256)
    A(f"""s_lshl2_add_u32 s{sT0}, s{sB}, s{sCT}
    s_lshl_b32 s{sT0}, s{sT0}, 9
    s_lshl4_add_u32 s{sT0}, s{sKQ}, s{sT0}
    s_add_u32 s{sT0}, s{sT0}, {WS_F2}
    s_lshl2_add_u32 s{sT1}, s{sB}, s{sKQ}
    s_lshl_b32 s{sT1}, s{sT1}, 8
    s_add_u32 s{sT2}, s{sT1}, {WS_F1}
    s_lshl4_add_u32 s{sT1}, s{sCT}, s{sT1}
    s_add_u32 s{sT1}, s{sT1}, {WS_F1 - 512}
    v_mov_b32 v1, s{sT0}
    v_mov_b32 v2, s{sT1}
    v_cmp_gt_u32 vcc, 4, v0
    v_mov_b32 v4, 0
    v_mov_b32 v5, 0
    v_cndmask_b32 v1, v2, v1, vcc
    v_lshl_add_u32 v1, v0, 7, v1
    v_mov_b32 v6, 0
    v_mov_b32 v7, 0
    s_mov_b64 exec, 63
    buffer_store_dwordx4 v[4:7], v1, s[{sFL}:{sFL+3}], 0 offen sc1
    s_mov_b64 exec, 1
    s_lshl_b32 s{sT0}, s{sB}, 2
    v_mov_b32 v2, s{sT0}
    v_mov_b32 v3, 1
    s_waitcnt vmcnt(0)
    buffer_atomic_add v3, v2, s[{sOUT}:{sOUT+3}], 0 offen sc1
    s_mov_b64 exec, -1
    s_mov_b32 s{sU2}, s{sT2}""")
    barriers(A, 10 + 2 + 8, "W3_i0")
    A(f"s_mov_b32 s{sT3}, 0\nv_mov_b32 v2, s{sT0}")
    A.label("W3_cnt")
    A(f"""buffer_load_dword v3, v2, s[{sOUT}:{sOUT+3}], 0 offen sc1
    s_add_u32 s{sT3}, s{sT3}, 1
    s_waitcnt vmcnt(0)
    v_readfirstlane_b32 s{sT1}, v3
    s_cmp_ge_u32 s{sT3}, {CFG['spin']}
    s_cbranch_scc1 W3_cnt_done
    s_cmp_ge_u32 s{sT1}, 16
    s_cbranch_scc0 W3_cnt""")
    A.label("W3_cnt_done")
    A(f"""v_mov_b32 v4, 0
    v_lshlrev_b32 v1, 2, v0
    v_and_b32 v1, 31, v1
    v_add_u32 v1, {SYNC}, v1
    ds_write_b32 v1, v4
    v_and_b32 v2, 15, v0
    v_lshlrev_b32 v2, 2, v2
    v_add_u32 v{vFa3}, s{sU2}, v2""")
    barriers(A, F - 2 - 8 + 1, "W3_i1")
    A(f"buffer_load_dword v{vFd3}, v{vFa3}, s[{sFL}:{sFL+3}], 0 offen sc1")
    A("s_barrier")
    stamp(A, 5)
    poll16(A, "W3_poll", vFa3, vFd3, "0x7777", first_issued=True)
    stamp(A, 6)
    A("s_barrier\ns_barrier")
    A("s_branch K_op")

    A.label("K_a2")
    barriers(A, DR - 16, "A_i0")
    A(f"s_waitcnt vmcnt(0)\ns_mov_b64 exec, 1\nbuffer_store_dword v{vD}, v{vD2}, s[{sFL}:{sFL+3}], 0 offen sc1\ns_mov_b64 exec, -1")
    stamp(A, 5)
    stamp(A, 6)
    if CFG["prio"]: A("s_setprio 0")
    barriers(A, F + 1 - DR, "A_i1")

    A.label("K_op")
    vAcc, FA0, vA, vB, vSy2, vJ, vRv = 64, 128, 2, 6, 10, 11, 176
    tab = [sum(sig[j + 8 * k] << (4 * j) for j in range(8)) for k in range(4)]
    A(f"""s_mov_b32 s{sTab}, {tab[0]:#x}
    s_mov_b32 s{sTab+1}, {tab[1]:#x}
    s_mov_b32 s{sTab2}, {tab[2]:#x}
    s_mov_b32 s{sTab2+1}, {tab[3]:#x}
    s_mov_b32 s{sCur}, {sig[0]*CH}
    s_mov_b32 s{sJ}, 0
    s_mov_b32 s{sR}, 0
    v_lshl_add_u32 v1, v{vHi}, 3, v{vR}
    v_mul_u32_u24 v1, 320, v1
    v_add3_u32 v1, v1, v{vCp}, s{sCur}
    v_add_u32 v15, {sig[0]*CH + 10240}, v{vSt}
    s_lshl2_add_u32 s{sT0}, s{sW}, {SYNC + 16}
    v_mov_b32 v{vSy2}, {SYNC}
    v_mov_b32 v{vSy2+2}, s{sT0}
    v_mov_b32 v{vJ}, 0""")
    for i in range(64): A(f"v_mov_b32 v{vAcc+i}, 0")
    for i in range(20): A(f"v_mov_b32 v{FA0+20+i}, 0")
    A(f"""s_lshl2_add_u32 s{sT0}, s{sB}, s{sCT}
    s_lshl_b32 s{sT1}, s{sT0}, 18
    s_add_u32 s{sT1}, s{sT1}, {WS_P}
    s_lshl_b32 s{sT0}, s{sT0}, 9
    s_add_u32 s{sT0}, s{sT0}, {WS_F2}""")
    srd_off(A, sWS, 18, sT1, 4 * 65536)
    srd_off(A, sFL, 18, sT0, 512)
    srd(A, sOUT, "s14", "s15", 1966080)
    A(f"s_cmp_eq_u32 s{sW}, 3\ns_cbranch_scc1 K_op1")
    for role in (0, 1):
        nA, nB = (4, 1) if role == 0 else (1, 3)
        nT = max(nA, nB)
        FAo = [FA0, FA0 + 20]; FBo = [FA0 + 4 * nA, FA0 + 20 + 4 * nA]
        sOwn = 20
        if role == 0:
            for s in range(4):
                A(f"s_add_u32 s{sOwn+s}, s{sKQ}, {s}\ns_and_b32 s{sOwn+s}, s{sOwn+s}, 3\ns_lshl_b32 s{sT0}, s{sOwn+s}, 6\nv_add_u32 v{vA+s}, s{sT0}, v1")
            A(f"s_lshl_b32 s{sT0}, s{sW}, 11\nv_add_u32 v{vB}, s{sT0}, v15")
        else:
            A.label("K_op1")
            A(f"v_add_u32 v{vA}, 256, v1\ns_cmp_eq_u32 s{sKQ}, 3\ns_cselect_b32 s{sOwn}, 0, s{sKQ}")
            for s in range(3):
                if s: A(f"s_add_u32 s{sOwn+s}, s{sOwn+s-1}, 1\ns_cmp_eq_u32 s{sOwn+s}, 3\ns_cselect_b32 s{sOwn+s}, 0, s{sOwn+s}")
                A(f"s_lshl_b32 s{sT0}, s{sOwn+s}, 11\nv_add_u32 v{vB+s}, s{sT0}, v15")
        A.label(f"O_loop{role}")
        A(f"s_cmp_lt_u32 s{sJ}, {n1}\ns_cbranch_scc0 O_tail{role}\ns_barrier")
        A.label(f"O_go{role}")
        def rd(ks, Fi):
            for t in range(nB):
                A.ds(f"ds_read_b128 {vr(FBo[Fi]+4*t,4)}, v{vB+t} offset:{ks*1024}", ("F", Fi))
            for t in range(nA):
                for p in range(2):
                    A.ds(f"ds_read_b64_tr_b16 {vr(FAo[Fi]+4*t+2*p,2)}, v{vA+t} offset:{(16*ks+4*p)*320}", ("F", Fi))
        def mmo(Fi):
            for t in range(nT):
                a = FAo[Fi] + (4 * t if role == 0 else 0); b = FBo[Fi] + (0 if role == 0 else 4 * t)
                A(f"{MFMA} {vr(vAcc+16*t,16)}, {vr(a,4)}, {vr(b,4)}, {vr(vAcc+16*t,16)}")
        A.lds_q = ["P"]
        rd(0, 0); mmo(1); rd(1, 1)
        A(f"""s_add_u32 s{sJ}, s{sJ}, 1
        s_lshr_b64 s[{sTab}:{sTab+1}], s[{sTab}:{sTab+1}], 4
        s_cmp_eq_u32 s{sJ}, 16
        s_cselect_b64 s[{sTab}:{sTab+1}], s[{sTab2}:{sTab2+1}], s[{sTab}:{sTab+1}]
        s_and_b32 s{sT0}, s{sTab}, 15
        s_lshl_b32 s{sT0}, s{sT0}, 14
        s_sub_u32 s{sDelta}, s{sT0}, s{sCur}
        s_mov_b32 s{sCur}, s{sT0}""")
        A.wait_ds(("F", 0))
        mmo(0)
        for t in range(nA): A(f"v_add_u32 v{vA+t}, s{sDelta}, v{vA+t}")
        for t in range(nB): A(f"v_add_u32 v{vB+t}, s{sDelta}, v{vB+t}")
        A(f"v_add_u32 v{vJ}, 1, v{vJ}")
        A.wait_ds()
        A(f"ds_write_b32 v{vSy2+2}, v{vJ}")
        if CFG["stamps"]:
            A(f"s_cmp_eq_u32 s{sJ}, 16\ns_cbranch_scc0 O_ns{role}")
            stamp(A, 0)
            A.label(f"O_ns{role}")
        A(f"s_cmp_lt_u32 s{sJ}, 32\ns_cbranch_scc1 O_loop{role}")
        mmo(1)
        A(f"s_lshl2_add_u32 s{sT3}, s{sKQ}, s{sW}\ns_lshl_b32 s{sT2}, s{sT3}, 12")
        A(f"v_and_b32 v1, 15, v0\nv_lshlrev_b32 v1, 2, v1\nv_mov_b32 v14, 1")
        A(f"v_mov_b32 v13, s{sOwn}")
        for s in range(1, nT): A(f"v_writelane_b32 v13, s{sOwn+s}, {s}")
        A(f"s_lshl_b32 s{sT3}, s{sT3}, 2\nv_lshlrev_b32 v13, 7, v13\nv_add_u32 v13, s{sT3}, v13")
        stamp(A, 1)
        def send(s):
            A(f"s_lshl_b32 s{sT0}, s{sOwn+s}, 16\ns_add_u32 s{sT0}, s{sT0}, s{sT2}")
            for jj in range(4):
                A(f"buffer_store_dwordx4 {vr(vAcc+16*s+4*jj,4)}, v{vSt}, s[{sWS}:{sWS+3}], s{sT0} offen offset:{jj*1024} sc1")
        if role == 0:
            A("s_nop 3")
            for s in (1, 2, 3): send(s)
            A("s_mov_b64 s[24:25], 14")
        else:
            A("s_nop 3")
            send(1); send(2)
            A(f"s_mov_b64 s[24:25], 6\ns_cmp_eq_u32 s{sKQ}, 3\ns_cbranch_scc0 O_s0\ns_mov_b64 s[24:25], 7")
            send(0)
            A.label("O_s0")
        A(f"""s_lshl_b32 s{sT0}, s{sKQ}, 7
        v_add_u32 v1, s{sT0}, v1
        s_lshl_b32 s{sT1}, 0x1111, s{sW}
        s_lshl_b32 s{sT0}, s{sKQ}, 2
        s_lshl_b32 s{sT0}, 15, s{sT0}
        s_andn2_b32 s26, s{sT1}, s{sT0}
        v_mul_u32_u24 v12, 1280, v{vN}
        v_lshl_add_u32 v12, v{vHi}, 4, v12
        s_mul_i32 s27, s{sB}, 122880
        s_mul_i32 s{sT0}, s{sCT}, 320
        s_add_u32 s27, s27, s{sT0}""")
        if role == 0:
            A(f"s_mul_i32 s{sT0}, s{sW}, 40960\ns_add_u32 s27, s27, s{sT0}\ns_lshl_b32 s{sT0}, s{sKQ}, 6\ns_add_u32 s27, s27, s{sT0}")
        else:
            A(f"s_mul_i32 s{sT0}, s{sKQ}, 40960\ns_add_u32 s27, s27, s{sT0}\ns_add_u32 s27, s27, 256")
        A(f"s_waitcnt vmcnt(0)\ns_mov_b64 exec, s[24:25]\nbuffer_store_dword v14, v13, s[{sFL}:{sFL+3}], 0 offen sc1\ns_mov_b64 exec, -1")
        stamp(A, 2)
        if role == 1:
            A(f"s_cmp_eq_u32 s{sKQ}, 3\ns_cbranch_scc0 O_rcv\ns_endpgm")
        else:
            A("s_branch O_rcv")
        A.label(f"O_tail{role}")
        A(f"s_cmp_gt_u32 s{sR}, s{sJ}\ns_cbranch_scc1 O_go{role}")
        A(f"""ds_read_b32 v14, v{vSy2}
        s_waitcnt lgkmcnt(0)
        v_readfirstlane_b32 s{sR}, v14
        s_branch O_tail{role}""")
    A.label("O_rcv")
    poll16(A, "O_poll", 1, 14, "s26")
    stamp(A, 3)
    A(f"s_lshl_b32 s{sT1}, s{sKQ}, 16\ns_lshl_b32 s{sT0}, s{sW}, 12\ns_add_u32 s{sT1}, s{sT1}, s{sT0}")
    for s in range(1, 4):
        A(f"s_add_u32 s{sT0}, s{sKQ}, {s}\ns_and_b32 s{sT0}, s{sT0}, 3\ns_lshl_b32 s{sT0}, s{sT0}, 14\ns_add_u32 s{sT0}, s{sT0}, s{sT1}")
        for jj in range(4):
            A.vm(f"buffer_load_dwordx4 {vr(vRv+16*(s-1)+4*jj,4)}, v{vSt}, s[{sWS}:{sWS+3}], s{sT0} offen offset:{jj*1024} sc1", s)
    for s in range(1, 4):
        A.wait_vm(s)
        for j in range(8): A(f"v_pk_add_f32 {vr(vAcc+2*j,2)}, {vr(vAcc+2*j,2)}, {vr(vRv+16*(s-1)+2*j,2)}")
    for j in range(8): A(f"v_cvt_pk_bf16_f32 v{24+j}, v{vAcc+2*j}, v{vAcc+2*j+1}")
    for m in range(2):
        A(f"buffer_store_dwordx4 {vr(24+4*m,4)}, v12, s[{sOUT}:{sOUT+3}], s27 offen offset:{m*32}")
    if CFG["stamps"]:
        A("s_waitcnt vmcnt(0)")
        stamp(A, 4)
        A(f"s_cmp_eq_u32 s{sW}, 0\ns_cbranch_scc0 O_e1")
        stamp_flush(A, 6, 11)
        A("s_endpgm")
        A.label("O_e1")
        A(f"s_cmp_eq_u32 s{sW}, 3\ns_cbranch_scc0 O_e2")
        A(f"s_mov_b64 s[{sSt}:{sSt+1}], s[{sSt+10}:{sSt+11}]\ns_mov_b64 s[{sSt+2}:{sSt+3}], s[{sSt+12}:{sSt+13}]")
        stamp_flush(A, 2, 17)
        A.label("O_e2")
    A("s_endpgm")
    A(f""".section .rodata,"a"
.p2align 6
.amdhsa_kernel {L}
.amdhsa_next_free_vgpr 256
.amdhsa_next_free_sgpr 96
.amdhsa_accum_offset 256
.amdhsa_group_segment_fixed_size 0
.amdhsa_kernarg_size 64
.amdhsa_user_sgpr_count 2
.amdhsa_user_sgpr_kernarg_segment_ptr 1
.amdhsa_system_sgpr_workgroup_id_x 1
.end_amdhsa_kernel""")

def main():
    A = Asm()
    A("; @launch grid=(256,1,1) block=(512,1,1) lds=163840")
    A('.amdgcn_target "amdgcn-amd-amdhsa--gfx950"\n.text')
    kernel(A)
    t = A.text()
    probs = check_hazards(t)
    for p in probs[:40]: print(p)
    print("hazards:", len(probs), "plan:", chunk_plan())
    open(sys.argv[1], "w").write(t)
    assert all((p * 3277) >> 16 == p // 20 for p in range(640))
main()
```

```python
import sys, math, struct
sys.path.insert(0, "gen")
from asmlib import *

NAME = "standalone__gqa_block_cached__near_ridge"
CFG = dict(nt=1, stamps=0, F=23, DR=18, NPRE2=8, rot=1, prio=1,
           kvA=1, kvB=5, kvC=8, wopre=15, spin=200000)
for a in sys.argv[2:]:
    k, v = a.split("=")
    CFG[k] = eval(v)

MFMA = "v_mfma_f32_32x32x16_bf16"
CSC = math.log2(math.e) / math.sqrt(128.0)
def f2u(x): return struct.unpack("<I", struct.pack("<f", x))[0]
THR = 1024.0

KV_SLOT, KV_N, V_OFF, K_OFF = 17152, 5, 0, 8704
def kv_phys(e): return ((e + 2) % KV_N) * KV_SLOT
QS_BASE, QS_SLOT, QX, QW = 74752, 29696, 0, 12288
def qs(it): return QS_BASE + ((it + 2) % 3) * QS_SLOT
SYNC = 85760
CH = 16384
WS_O = 0
WS_P = 16 << 20
WS_F1 = 32 << 20
WS_F2 = WS_F1 + 65536
WS_STAMP = 128 << 20
NST = 24

sW = 3
sX, sWQ, sK, sV, sWS, sWO, sOUT = 20, 24, 28, 32, 36, 40, 44
sB, sKQ, sCT, sH0 = 48, 49, 50, 51
sT0, sT1, sT2, sT3 = 52, 53, 54, 55
sI, sRr = 56, 57
sCnt, sSlot, sDelta = 58, 59, 60
sCX, sCW, sU1, sU2 = 61, 62, 63, 64
sJ, sR, sCur = 61, 62, 63
sTab, sTab2 = 64, 66
sThr, sCs = 68, 70
sFL = 72
sSt = 76

def srd(A, d, lo, hi, n):
    A(f"s_mov_b32 s{d}, {lo}\ns_mov_b32 s{d+1}, {hi}\ns_mov_b32 s{d+2}, {n}\ns_mov_b32 s{d+3}, 0x20000")
def srd_off(A, d, p, soff, n):
    A(f"s_add_u32 s{d}, s{p}, s{soff}\ns_addc_u32 s{d+1}, s{p+1}, 0\ns_mov_b32 s{d+2}, {n}\ns_mov_b32 s{d+3}, 0x20000")

def stamp(A, i):
    if CFG["stamps"]: A(f"s_memrealtime s[{sSt+2*i}:{sSt+2*i+1}]")
def stamp_flush(A, n, slot0):
    if not CFG["stamps"]: return
    A("s_waitcnt lgkmcnt(0) vmcnt(0)")
    A(f"s_mov_b32 s{sT0}, {WS_STAMP}")
    srd_off(A, sOUT, 18, sT0, 0x100000)
    A(f"s_mul_i32 s{sT0}, s2, {NST*8}\ns_add_u32 s{sT0}, s{sT0}, {slot0*8}")
    A(f"s_mov_b64 exec, 1\nv_mov_b32 v1, s{sT0}")
    for i in range(n):
        A(f"v_mov_b32 v2, s{sSt+2*i}\nv_mov_b32 v3, s{sSt+2*i+1}")
        A(f"buffer_store_dwordx2 v[2:3], v1, s[{sOUT}:{sOUT+3}], 0 offen offset:{8*i}")
        A("s_nop 1")
    A("s_mov_b64 exec, -1")

LST = [0]
LSTN = []
def lstamp(A, name):
    if not CFG.get("lst"): return
    i = LST[0]
    if i > 0:
        A(f"s_waitcnt lgkmcnt(0)\nv_writelane_b32 v{40 + (i-1)//64}, s{96 + 2*((i-1)&1)}, {(i-1)%64}")
    if name is not None:
        A(f"s_memrealtime s[{96+2*(i&1)}:{97+2*(i&1)}]")
        LSTN.append(name); LST[0] += 1
def lst_flush(A):
    if not CFG.get("lst"): return
    lstamp(A, None)
    A(f"s_waitcnt vmcnt(0)\ns_mov_b32 s{sT0}, {WS_STAMP + (1<<20)}")
    srd_off(A, sOUT, 18, sT0, 0x100000)
    A(f"s_mul_i32 s{sT0}, s2, 1024\nv_lshlrev_b32 v1, 2, v0")
    for k in range(3): A(f"buffer_store_dword v{40+k}, v1, s[{sOUT}:{sOUT+3}], s{sT0} offen offset:{256*k}")
    open("lst_names.txt", "w").write("\n".join(LSTN))

def barriers(A, n, tag):
    if n <= 4:
        for _ in range(n): A("s_barrier")
    else:
        A(f"s_mov_b32 s{sCnt}, 0")
        A.label(tag)
        A(f"s_barrier\ns_add_u32 s{sCnt}, s{sCnt}, 1\ns_cmp_lt_u32 s{sCnt}, {n}\ns_cbranch_scc1 {tag}")

def poll16(A, tag, vaddr, vd, mask_s, first_issued=False, srdn=sFL, soff="0"):
    A(f"s_mov_b32 s{sT3}, 0")
    if first_issued: A(f"s_branch {tag}_chk")
    A.label(tag)
    A(f"buffer_load_dword v{vd}, v{vaddr}, s[{srdn}:{srdn+3}], {soff} offen sc1")
    A.label(f"{tag}_chk")
    A(f"""s_waitcnt vmcnt(0)
    v_cmp_eq_u32 vcc, 1, v{vd}
    s_add_u32 s{sT3}, s{sT3}, 1
    s_and_b32 s{sT2}, vcc_lo, {mask_s}
    s_cmp_ge_u32 s{sT3}, {CFG['spin']}
    s_cbranch_scc1 {tag}_done
    s_cmp_eq_u32 s{sT2}, {mask_s}
    s_cbranch_scc0 {tag}""")
    A.label(f"{tag}_done")

def chunk_plan():
    F = CFG["F"]
    n1 = 30 - F
    inround = {}
    nxt = 4
    e = F + 4
    while e <= 29:
        inround[e] = [nxt, nxt + 1]; nxt += 2; e += 2
    n_iss = nxt
    sig = {j: 6 + (j % 4) for j in range(n_iss)}
    free = []
    for j in range(n_iss - 4, n_iss):
        if j <= n1 - 2: free.append((sig[j], 0))
    free += [(s, 0) for s in (0, 1, 2, 4)]
    pend = [j for j in range(n_iss - 4, n_iss) if j > n1 - 2]
    need = {}
    j = n_iss
    npre_end = 16 + CFG["NPRE2"]
    while j < 32:
        if j == npre_end: free.insert(0, (3, 0))
        if not free:
            k = pend.pop(0); free.append((sig[k], k + 1))
        s, p = free.pop(0)
        sig[j] = s; need[j] = p; pend.append(j)
        j += 1
    assert all(need[j] <= 16 for j in range(n_iss, npre_end))
    return n1, n_iss, inround, sig, need

def kernel(A):
    L = NAME + "_kernel"
    F, DR = CFG["F"], CFG["DR"]
    n1, n_iss, inround, sig, need = chunk_plan()
    A(f".globl {L}\n.p2align 8\n.type {L},@function")
    A.label(L)
    A(f"s_cmp_lt_u32 s2, 256\ns_cbranch_scc1 K_go\ns_endpgm")
    A.label("K_go")
    A("s_load_dwordx16 s[4:19], s[0:1], 0")
    if CFG.get("padto"): A("s_memrealtime s[98:99]")
    stamp(A, 0)
    A(f"""s_and_b32 s{sT0}, s2, 7
    s_lshr_b32 s{sKQ}, s{sT0}, 1
    s_and_b32 s{sT0}, s{sT0}, 1
    s_lshr_b32 s{sT1}, s2, 3
    s_and_b32 s{sCT}, s{sT1}, 3
    s_lshr_b32 s{sT1}, s{sT1}, 2
    s_lshl_b32 s{sB}, s{sT0}, 3
    s_add_u32 s{sB}, s{sB}, s{sT1}
    s_lshl_b32 s{sH0}, s{sKQ}, 3
    s_lshl_b32 s{sT0}, s{sCT}, 1
    s_add_u32 s{sH0}, s{sH0}, s{sT0}
    v_lshrrev_b32 v1, 6, v0
    v_and_b32 v0, 63, v0
    v_readfirstlane_b32 s{sW}, v1""")
    NT = " nt" if CFG["nt"] else ""
    A(f"s_cmp_eq_u32 s{sW}, 7\ns_cbranch_scc0 K_notld")

    vW, vX, vK, vV, vWo, vOo, vFa, vFd, vSy = 8, 12, 16, 20, 24, 34, 35, 36, 37
    if CFG["prio"]: A("s_setprio 3")
    A(f"""v_lshrrev_b32 v1, 3, v0
    v_and_b32 v2, 7, v0
    v_lshrrev_b32 v3, 4, v0
    v_xor_b32 v4, v2, v3
    v_xor_b32 v5, 4, v4
    v_mul_u32_u24 v1, 1280, v1
    v_lshl_add_u32 v{vX}, v4, 4, v1
    v_lshl_add_u32 v{vX+1}, v5, 4, v1
    v_add_u32 v{vX+2}, {2*10240-2048}, v{vX}
    v_add_u32 v{vX+3}, {3*10240-3072}, v{vX+1}
    v_add_u32 v{vX+1}, {10240-1024}, v{vX+1}
    v_and_b32 v2, 15, v0
    v_lshlrev_b32 v4, 17, v3
    v_lshl_add_u32 v{vW}, v2, 4, v4""")
    for j in range(1, 4): A(f"v_add_u32 v{vW+j}, {j*(8192-1088)}, v{vW}")
    A(f"""s_and_b32 s{sT0}, s{sB}, 7
    s_lshr_b32 s{sT1}, s{sT0}, 2
    s_add_u32 s{sT0}, s{sT0}, s{sT1}
    s_mul_i32 s{sT1}, s{sCT}, 5
    s_lshr_b32 s{sT1}, s{sT1}, 1
    s_add_u32 s{sCX}, s{sT0}, s{sT1}
    s_sub_u32 s{sT0}, s{sCX}, 10
    s_cmp_ge_u32 s{sCX}, 10
    s_cselect_b32 s{sCX}, s{sT0}, s{sCX}""")
    if not CFG["rot"]: A(f"s_mov_b32 s{sCX}, 0")
    A(f"s_lshl_b32 s{sCW}, s{sCX}, 19\ns_lshl_b32 s{sCX}, s{sCX}, 7")
    A(f"s_mul_i32 s{sT0}, s{sB}, 122880\ns_lshl_b32 s{sT1}, s{sH0}, 8\ns_sub_u32 s{sT2}, 5242880, s{sT1}")
    A("s_waitcnt lgkmcnt(0)")
    srd_off(A, sX, 4, sT0, 122880)
    srd_off(A, sWQ, 10, sT1, f"s{sT2}")
    def issue_X(it):
        base = qs(it) + QX
        for a in range(3):
            A(f"s_mov_b32 m0, {base + a*4096}")
            A(f"s_add_u32 s{sT0}, s{sCX}, {a*40960}")
            for n in range(4):
                A.vm(f"buffer_load_dwordx4 v{vX+n}, s[{sX}:{sX+3}], s{sT0} offen offset:{n*1024} lds", ("XW", it))
        A(f"s_add_u32 s{sCX}, s{sCX}, 128\ns_cmp_eq_u32 s{sCX}, 1280\ns_cselect_b32 s{sCX}, 0, s{sCX}")
    def issue_W(it):
        base = qs(it) + QW
        r = 1 if it >= 10 else 0
        for a in range(4):
            A(f"s_mov_b32 m0, {base + a*4352}")
            A(f"s_add_u32 s{sT0}, s{sCW}, {a*32768 + r*256}")
            for n in range(4):
                A.vm(f"buffer_load_dwordx4 v{vW+n}, s[{sWQ}:{sWQ+3}], s{sT0} offen offset:{n*1088} lds", ("XW", it))
        A(f"s_add_u32 s{sCW}, s{sCW}, {64*8192}\ns_cmp_eq_u32 s{sCW}, 5242880\ns_cselect_b32 s{sCW}, 0, s{sCW}")
    def issue_K(t):
        base = kv_phys(t - 2) + K_OFF
        for a in range(2):
            A(f"s_mov_b32 m0, {base + a*4224}\ns_mov_b32 s{sT0}, {t*8192 + a*1024}")
            for n in range(4):
                A.vm(f"buffer_load_dwordx4 v{vK+n}, s[{sK}:{sK+3}], s{sT0} offen offset:{n*1056}{NT} lds", ("K", t))
    def issue_V(t):
        base = kv_phys(t) + V_OFF
        for a in range(2):
            A(f"s_mov_b32 m0, {base + a*4352}\ns_mov_b32 s{sT0}, {t*8192 + a*1024}")
            for n in range(4):
                A.vm(f"buffer_load_dwordx4 v{vV+n}, s[{sV}:{sV+3}], s{sT0} offen offset:{n*1088}{NT} lds", ("V", t))
    issue_X(0); issue_W(0); issue_X(1); issue_W(1)
    A(f"""v_lshrrev_b32 v1, 5, v0
    v_xor_b32 v1, v2, v1
    v_lshlrev_b32 v4, 11, v3
    v_add_u32 v4, 4096, v4
    v_lshl_add_u32 v{vK}, v1, 4, v4
    v_lshl_add_u32 v{vV}, v2, 4, v4""")
    for j in range(1, 4):
        A(f"v_subrev_u32 v{vK+j}, {j*800}, v{vK}\nv_subrev_u32 v{vV+j}, {j*832}, v{vV}")
    A(f"s_lshl_b32 s{sT3}, s{sB}, 5\ns_add_u32 s{sT3}, s{sT3}, s{sH0}\ns_lshl_b32 s{sT3}, s{sT3}, 17")
    for d, p in ((sK, 6), (sV, 8)):
        srd_off(A, d, p, sT3, 262144 + 4096)
        A(f"s_sub_u32 s{d}, s{d}, 4096\ns_subb_u32 s{d+1}, s{d+1}, 0")
    def late_setup():
        for n in range(10):
            A(f"v_add_u32 v1, {64*n}, v0\nv_mul_u32_u24 v2, 3277, v1\nv_lshrrev_b32 v2, 16, v2")
            A(f"v_mul_u32_u24 v3, 20, v2\nv_sub_u32 v3, v1, v3\nv_mul_u32_u24 v2, 1280, v2\nv_lshl_add_u32 v2, v3, 4, v2")
            A(f"v_subrev_u32 v{vWo+n}, {(n%4)*1024}, v2")
        A(f"v_lshlrev_b32 v{vOo}, 4, v0\nv_lshlrev_b32 v{vFa}, 2, v0\nv_mov_b32 v{vSy}, {SYNC}")
        A(f"s_mul_i32 s{sT0}, s{sKQ}, {1024*1280}\ns_mul_i32 s{sT1}, s{sCT}, 320\ns_add_u32 s{sT0}, s{sT0}, s{sT1}\ns_sub_u32 s{sT1}, 5242880, s{sT0}")
        srd_off(A, sWO, 12, sT0, f"s{sT1}")
        A(f"s_lshl_b32 s{sT2}, s{sB}, 5\ns_lshl_b32 s{sT3}, s{sKQ}, 3\ns_add_u32 s{sT2}, s{sT2}, s{sT3}\ns_mul_i32 s{sT2}, s{sT2}, 24576")
        srd_off(A, sWS, 18, sT2, 8 * 24576)
        A(f"s_lshl_b32 s{sT0}, s{sB}, 2\ns_add_u32 s{sT0}, s{sT0}, s{sKQ}\ns_lshl_b32 s{sT0}, s{sT0}, 8\ns_add_u32 s{sT0}, s{sT0}, {WS_F1 + 128}")
        srd_off(A, sFL, 18, sT0, 64)
        A(f"s_and_b32 s{sT0}, s{sB}, 7\ns_lshl_b32 s{sT0}, s{sT0}, 1\ns_lshl_b32 s{sT1}, s{sCT}, 2\ns_add_u32 s{sT0}, s{sT0}, s{sT1}")
        A(f"s_and_b32 s{sU1}, s{sT0}, 15\ns_mov_b32 s{sU2}, s{sU1}")
    def chunk_u(cnt, r, mul):
        A(f"""s_lshr_b32 s{sT1}, s{cnt}, 2
        s_and_b32 s{sT0}, s{cnt}, 3
        s_lshl3_add_u32 s{sT0}, s{sT1}, s{sT0}""")
        if r: A(f"s_add_u32 s{sT0}, s{sT0}, 4")
        A(f"s_mul_i32 s{sT0}, s{sT0}, {mul}\ns_add_u32 s{cnt}, s{cnt}, 1\ns_and_b32 s{cnt}, s{cnt}, 15")
    def issue_wo(j):
        chunk_u(sU1, j >= 16, 40960)
        for n in range(10):
            if n % 4 == 0: A(f"s_mov_b32 m0, {sig[j]*CH + n*1024}\ns_nop 0")
            A.vm(f"buffer_load_dwordx4 v{vWo+n}, s[{sWO}:{sWO+3}], s{sT0} offen offset:{(n%4)*1024} lds", ("C", j))
    def issue_O(j):
        chunk_u(sU2, j >= 16, 6144)
        for n in range(6):
            if n % 4 == 0:
                A(f"s_mov_b32 m0, {sig[j]*CH + 10240 + n*1024}")
                A(f"s_add_u32 s{sT0}, s{sT0}, 4096" if n else "s_nop 0")
            A.vm(f"buffer_load_dwordx4 v{vOo}, s[{sWS}:{sWS+3}], s{sT0} offen offset:{(n%4)*1024} sc1 lds", ("C", j))
    def publish(n):
        A(f"v_mov_b32 v1, {n}\nds_write_b32 v{vSy}, v1")
    npoll = [0]
    def wait_P(n):
        npoll[0] += 1
        t = f"L_wp{npoll[0]}"
        A.label(t)
        A(f"""ds_read_b128 v[4:7], v{vSy} offset:16
        s_waitcnt lgkmcnt(0)
        v_min_u32 v4, v4, v5
        v_min3_u32 v4, v4, v6, v7
        s_nop 0
        v_readfirstlane_b32 s{sT1}, v4
        s_cmp_ge_u32 s{sT1}, {n}
        s_cbranch_scc0 {t}""")
        lstamp(A, f"P>={n}")
    kvb = {CFG["kvA"]: [("K", 0), ("K", 1), ("V", 0), ("K", 2)], CFG["kvB"]: [("V", 1), ("K", 3), ("V", 3), ("V", 4)]}
    kvb.setdefault(CFG["kvC"], []); kvb[CFG["kvC"]] = kvb[CFG["kvC"]] + [("K", 4), ("V", 2)]
    assert CFG["kvC"] >= 8
    for j in range(10):
        A.wait_vm(("XW", j))
        lstamp(A, f"arr Q{j}")
        A("s_barrier")
        lstamp(A, f"dep Q{j}")
        if j == 0: stamp(A, 1)
        if j + 2 <= 9: issue_X(j + 2); issue_W(j + 2)
        for kind, t in kvb.get(j, []):
            (issue_K if kind == "K" else issue_V)(t)
        if j == 2: late_setup()
    w2_issue = {-2: [10, 11, 12], 3: [13, 14], 5: [15], 7: [16, 17], 9: [18], 11: [19]}
    w2_use = {1: 10, 2: 11, 3: 12, 5: 13, 6: 14, 7: 15, 9: 16, 10: 17, 11: 18, 13: 19}
    for e in range(-2, 32):
        if e + 2 <= 31: A.wait_vm(("K", e + 2))
        if e >= 0: A.wait_vm(("V", e))
        if e in w2_use: A.wait_vm(("XW", w2_use[e]))
        if F + 2 <= e: A.wait_vm(("C", e - F - 2))
        if e == 31:
            A.wait_vm(("C", n_iss - 1)); publish(n_iss); A("s_waitcnt lgkmcnt(0)")
        lstamp(A, f"arr {e}")
        A("s_barrier")
        lstamp(A, f"dep {e}")
        if e == -2: stamp(A, 2)
        if e == 0: stamp(A, 3)
        if e == 16: stamp(A, 4)
        if e == 31: stamp(A, 5)
        if e >= 0 and e % 2 == 0:
            for kind, t in (("V", e + 3), ("K", e + 5), ("V", e + 4), ("K", e + 6)):
                if t > 31 or (kind == "V" and t <= 4): continue
                if CFG.get("noload"): continue
                (issue_K if kind == "K" else issue_V)(t)
        for it in w2_issue.get(e, []): issue_W(it)
        if CFG.get("nowo"): continue
        if e == CFG["wopre"]:
            for j in range(4): issue_wo(j)
        if e == F:
            for j in range(4): issue_O(j)
        for j in inround.get(e, []): issue_wo(j); issue_O(j)
    pub = n_iss
    def ensure_pub(n):
        nonlocal pub
        if pub < n:
            A.wait_vm(("C", n - 1)); publish(n); pub = n
            lstamp(A, f"pub {n}")
    npre_end = 16 + CFG["NPRE2"]
    lastP = 0
    for j in range(n_iss, npre_end):
        if need[j] > lastP:
            ensure_pub(min(need[j], 16)); wait_P(need[j]); lastP = need[j]
        issue_wo(j)
        if j < 16: issue_O(j)
        ensure_pub(min(j - 1, 16))
    ensure_pub(16)
    stamp(A, 6)
    poll16(A, "L_poll", vFa, vFd, "0x7777")
    A.vm_q = []
    lstamp(A, "flags")
    stamp(A, 7)
    for j in range(16, npre_end):
        issue_O(j)
        if j - 5 >= 16: ensure_pub(j - 4)
    for j in range(npre_end, 32):
        if need[j] > lastP:
            ensure_pub(need[j]); wait_P(need[j]); lastP = need[j]
        issue_wo(j); issue_O(j)
        for k in range(pub + 1, j): ensure_pub(k)
    for k in range(pub + 1, 33): ensure_pub(k)
    stamp(A, 8)
    lst_flush(A)
    stamp_flush(A, 9, 0)
    A("s_endpgm")
    A.vm_q = []

    A.label("K_notld")
    vKa, vVa, vL, vTs, vD, vD2, vSt, vWa, vXa, vTmp = 2, 3, 4, 5, 7, 8, 9, 10, 11, 15
    vT, vP, vQ, vO, vS, vC, vKf, vVf = 16, 24, 32, 64, 128, 160, 176, 208
    FA = [208, 224]; FB = [240, 244]
    vHi, vN, vG, vR, vCp = 248, 249, 250, 251, 252
    A(f"s_and_b32 s{sI}, s{sW}, 3\ns_lshr_b32 s{sRr}, s{sW}, 2")
    A(f"""v_lshrrev_b32 v{vHi}, 5, v0
    v_and_b32 v{vN}, 31, v0
    v_bfe_u32 v{vG}, v0, 4, 1
    v_bfe_u32 v{vR}, v0, 2, 2
    v_and_b32 v1, 1, v0
    v_bfe_u32 v15, v0, 1, 1
    v_lshl_add_u32 v{vCp}, v1, 1, v15
    v_lshlrev_b32 v{vCp}, 3, v{vCp}
    v_lshl_add_u32 v{vCp}, v{vG}, 5, v{vCp}
    v_lshlrev_b32 v{vSt}, 4, v0""")
    A(f"s_cmp_eq_u32 s{sW}, 3\ns_cbranch_scc1 K_w3")
    A(f"""s_cmp_eq_u32 s{sRr}, 0
    s_cselect_b32 s{sT1}, {qs(0) - QS_BASE}, 0
    s_lshl_b32 s{sT0}, s{sI}, 12
    s_add_u32 s{sT0}, s{sT0}, s{sT1}
    s_add_u32 s{sT0}, s{sT0}, {QS_BASE + QX}
    s_add_u32 s{sT1}, s{sT1}, {QS_BASE + QW}
    v_bfe_u32 v1, v0, 1, 3
    v_xor_b32 v1, v1, v{vHi}
    v_lshlrev_b32 v1, 4, v1
    v_lshl_add_u32 v1, v{vN}, 7, v1""")
    for ks in range(4):
        A(f"v_xor_b32 v15, {ks<<5}, v1\nv_add_u32 v{vXa+ks}, s{sT0}, v15")
    A(f"""v_lshl_add_u32 v1, v{vHi}, 3, v{vR}
    v_mul_u32_u24 v1, 1088, v1
    v_add3_u32 v{vWa}, v1, v{vCp}, s{sT1}""")
    A(f"""s_cmp_eq_u32 s{sRr}, 0
    s_mov_b32 s{sT0}, {kv_phys(14) + K_OFF}
    s_cselect_b32 s{sT0}, {kv_phys(-2) + K_OFF}, s{sT0}
    s_mov_b32 s{sSlot}, {kv_phys(16)}
    s_cselect_b32 s{sSlot}, {kv_phys(0)}, s{sSlot}
    v_and_b32 v1, 7, v0
    v_mul_u32_u24 v1, 1056, v1
    v_bfe_u32 v15, v0, 3, 2
    v_lshl_add_u32 v1, v15, 8, v1
    v_xor_b32 v15, v{vHi}, v{vG}
    v_lshl_add_u32 v1, v15, 4, v1
    v_add_u32 v{vKa}, s{sT0}, v1
    v_lshl_add_u32 v1, v{vHi}, 2, v{vR}
    v_mul_u32_u24 v1, 1088, v1
    v_add3_u32 v{vVa}, v1, v{vCp}, s{sSlot}""")
    assert kv_phys(-1) - kv_phys(-2) == KV_SLOT and kv_phys(0) - kv_phys(-1) == KV_SLOT
    assert kv_phys(15) - kv_phys(14) == KV_SLOT and kv_phys(16) - kv_phys(15) == KV_SLOT
    A(f"s_mov_b32 s{sCs}, {f2u(CSC):#x}\ns_mov_b32 s{sCs+1}, {f2u(CSC):#x}\ns_mov_b32 s{sThr}, {f2u(THR):#x}")
    for i in range(64): A(f"v_mov_b32 v{vO+i}, 0")
    for i in range(16): A(f"v_mov_b32 v{FA[1]+i}, 0")
    for i in range(4): A(f"v_mov_b32 v{FB[1]+i}, 0")
    A("s_waitcnt lgkmcnt(0)")
    A(f"s_lshl_b32 s{sT0}, s{sB}, 5\ns_add_u32 s{sT0}, s{sT0}, s{sH0}\ns_add_u32 s{sT0}, s{sT0}, s{sRr}")
    A(f"s_mul_i32 s{sT0}, s{sT0}, 24576\ns_lshl_b32 s{sT1}, s{sI}, 11\ns_add_u32 s{sT0}, s{sT0}, s{sT1}")
    srd_off(A, sWS, 18, sT0, 24576)
    A(f"""s_lshl_b32 s{sT0}, s{sB}, 2
    s_add_u32 s{sT0}, s{sT0}, s{sKQ}
    s_lshl1_add_u32 s{sT0}, s{sT0}, s{sRr}
    s_lshl_b32 s{sT0}, s{sT0}, 7
    s_lshl2_add_u32 s{sT1}, s{sCT}, s{sI}
    s_lshl2_add_u32 s{sT0}, s{sT1}, s{sT0}
    s_add_u32 s{sT0}, s{sT0}, {WS_F1}""")
    srd_off(A, sFL, 18, sT0, 4)
    A(f"s_cmp_eq_u32 s{sRr}, 0\ns_cbranch_scc0 K_bgrp")

    def gemm4(woff, xsrc, prevB):
        def rd(ks, Fi):
            kind, val = xsrc(ks)
            if kind == "lds": A.ds(f"ds_read_b128 {vr(FB[Fi],4)}, v{vXa+ks} offset:{val}", ("F", Fi))
            for t in range(4):
                for p in range(2):
                    A.ds(f"ds_read_b64_tr_b16 {vr(FA[Fi]+4*t+2*p,2)}, v{vWa} offset:{woff + p*4352 + ks*256 + 64*t}", ("F", Fi))
            return FB[Fi] if kind == "lds" else val
        def mm(Fi, b):
            for t in range(4):
                A(f"{MFMA} {vr(vO+16*t,16)}, {vr(FA[Fi]+4*t,4)}, {vr(b,4)}, {vr(vO+16*t,16)}")
        b0 = rd(0, 0); mm(1, prevB)
        b1 = rd(1, 1); A.wait_ds(("F", 0)); mm(0, b0)
        b0 = rd(2, 0); A.wait_ds(("F", 1)); mm(1, b1)
        b1 = rd(3, 1)
        return b0, b1, mm
    A(f"s_mov_b32 s{sCnt}, 0\ns_mov_b32 s{sT2}, 2")
    A.label("A_q")
    A("s_barrier")
    b0, b1, mm = gemm4(0, lambda ks: ("lds", 0), FB[1])
    A(f"""s_add_u32 s{sT2}, s{sT2}, 1
    s_mov_b32 s{sDelta}, {QS_SLOT}
    s_cmp_eq_u32 s{sT2}, 3
    s_cselect_b32 s{sDelta}, {-2*QS_SLOT & 0xffffffff:#x}, s{sDelta}
    s_cselect_b32 s{sT2}, 0, s{sT2}""")
    A.wait_ds(("F", 0)); mm(0, b0)
    A(f"v_add_u32 v{vWa}, s{sDelta}, v{vWa}")
    for ks in range(4): A(f"v_add_u32 v{vXa+ks}, s{sDelta}, v{vXa+ks}")
    A.wait_ds()
    A(f"s_add_u32 s{sCnt}, s{sCnt}, 1\ns_cmp_lt_u32 s{sCnt}, 10\ns_cbranch_scc1 A_q")
    A("s_branch K_att")
    A.label("K_bgrp")
    def xreg(it, ks): return (16 + 16 * it if it < 3 else 128 + 16 * (it - 3)) + 4 * ks
    for it in range(8):
        A("s_barrier")
        for ks in range(4):
            A(f"ds_read_b128 {vr(xreg(it,ks),4)}, v{vXa+ks} offset:{qs(it) - QS_BASE}")
        A("s_waitcnt lgkmcnt(0)")
    barriers(A, 5, "B_i0")
    prevB = FB[1]
    for e in range(1, 14):
        A("s_barrier")
        if e in w2_use and not CFG.get("noq2"):
            it = w2_use[e]; c = it - 10
            src = (lambda ks, c=c: ("reg", xreg(c, ks))) if c < 8 else (lambda ks, c=c: ("lds", qs(c) - QS_BASE))
            b0, b1, mm = gemm4(qs(it) - QS_BASE, src, prevB)
            A.wait_ds(("F", 0)); mm(0, b0)
            A.wait_ds()
            prevB = b1
    assert prevB == FB[1]
    if CFG["prio"]: A("s_setprio 1")

    A.label("K_att")
    def kreads(lo=0, hi=8): return [f"ds_read_b128 {vr(vKf+4*ks,4)}, v{vKa} offset:{32*ks}" for ks in range(lo, hi)]
    def qk(ks, S, c0): return f"{MFMA} {vr(S,16)}, {vr(vKf+4*ks,4)}, {vr(vQ+4*ks,4)}, " + (c0 if ks == 0 else vr(S,16))
    A("s_barrier")
    for x in kreads(): A(x)
    mm(1, FB[1])
    A(f"v_add_u32 v{vKa}, {KV_SLOT}, v{vKa}\nv_mov_b32 v{vL}, 0\ns_nop 7\ns_nop 1")
    for t in range(4):
        if t == 3: A("s_nop 1")
        for j in range(8):
            A(f"v_pk_mul_f32 {vr(vO+16*t+2*j,2)}, {vr(vO+16*t+2*j,2)}, s[{sCs}:{sCs+1}]")
        for j in range(8):
            A(f"v_cvt_pk_bf16_f32 v{vQ+8*t+j}, v{vO+16*t+2*j}, v{vO+16*t+2*j+1}")
    A("s_waitcnt lgkmcnt(0)\ns_barrier")
    kr = kreads()
    for ks in range(8):
        A(qk(ks, vS, "0"))
        for i in range(8): A(f"v_mov_b32 v{vO+8*ks+i}, 0")
        if ks >= 1: A(kr[ks - 1])
    A(kr[7])
    A(f"v_add_u32 v{vKa}, {KV_SLOT}, v{vKa}\ns_nop 7\ns_nop 1")
    A(f"v_max3_f32 v{vD}, v{vS}, v{vS+1}, v{vS+2}")
    for j in range(6): A(f"v_max3_f32 v{vD}, v{vD}, v{vS+3+2*j}, v{vS+4+2*j}")
    A(f"""v_max_f32 v{vD}, v{vD}, v{vS+15}
    v_mov_b32 v{vD2}, v{vD}
    s_nop 1
    v_permlane32_swap_b32 v{vD2}, v{vD}
    s_nop 1
    v_max_f32 v{vD}, v{vD}, v{vD2}""")
    for i in range(16): A(f"v_sub_f32 v{vS+i}, v{vS+i}, v{vD}")
    for i in range(16): A(f"v_sub_f32 v{vC+i}, 0, v{vD}")
    def E(S, i): return f"v_exp_f32 v{vT+(i&7)}, v{S+i}"
    def Ad(i):
        h = i >> 3
        if i & 7 == 1: return f"v_add_f32 v{vTs+h}, v{vT+((i-1)&7)}, v{vT+(i&7)}"
        return f"v_add_f32 v{vTs+h}, v{vTs+h}, v{vT+(i&7)}"
    def Cv(j): return f"v_cvt_pk_bf16_f32 v{vP+j}, v{vT+((2*j)&7)}, v{vT+((2*j+1)&7)}"
    def Vr(m, dt, p): return f"ds_read_b64_tr_b16 {vr(vVf+16*m+4*dt+2*p,2)}, v{vVa} offset:{(2*m+p)*256+64*dt}"
    for x in (E(vS, 0), E(vS, 1), E(vS, 2), E(vS, 3), Ad(1), Cv(0)): A(x)
    A(f"s_mov_b32 s{sCnt}, 0\ns_waitcnt lgkmcnt(0)")
    A.label("K_loop")
    for half in range(2):
        Sc, Sn = vS + 16 * half, vS + 16 * (1 - half)
        vq = [Vr(m, dt, p) for m in range(2) for dt in range(4) for p in range(2)]
        kq_ = kreads()
        V = lambda: ("ds", vq.pop(0))
        K = lambda: ("ds", kq_.pop(0))
        cmp_ = lambda h: f"v_cmp_lt_f32 vcc, s{sThr}, v{vTs+h}"
        br = lambda h: ("br", h)
        lad = lambda h: f"v_add_f32 v{vL}, v{vL}, v{vTs+h}"
        ring = [f"s_add_u32 s{sSlot}, s{sSlot}, {KV_SLOT}", f"s_mov_b32 s{sDelta}, {KV_SLOT}", f"s_cmp_eq_u32 s{sSlot}, {KV_N*KV_SLOT}",
                f"s_cselect_b32 s{sDelta}, {-(KV_N-1)*KV_SLOT & 0xffffffff:#x}, s{sDelta}", f"s_cselect_b32 s{sSlot}, 0, s{sSlot}"]
        gaps = [
            [E(Sc, 4), V(), Ad(2), V(), Ad(3)],
            [E(Sc, 5), V(), Cv(1), V(), Ad(4)],
            [E(Sc, 6), V(), Ad(5), V(), Cv(2)],
            [E(Sc, 7), V(), Ad(6), V(), ring[0]],
            [Ad(7), E(Sc, 8), Cv(3), cmp_(0), V()],
            [E(Sc, 9), V(), br(0), lad(0), V()],
            [E(Sc, 10), Ad(9), V(), Cv(4), V()],
            [E(Sc, 11), Ad(10), V(), V(), ("wv", 0)],
            [E(Sc, 12), Ad(11), V(), Cv(5), ring[1]],
            [E(Sc, 13), Ad(12), E(Sc, 14), Ad(13)],
            [E(Sc, 15), Cv(6), Ad(14), K(), K()],
            [Ad(15), Cv(7), cmp_(1), K(), K(), br(1), ("wv", 1)],
            [lad(1), K(), K(), ring[2], ring[3], ring[4]],
            [K(), K(), f"v_add_u32 v{vVa}, s{sDelta}, v{vVa}", f"v_add_u32 v{vKa}, s{sDelta}, v{vKa}"],
            [E(Sn, 0), E(Sn, 1), E(Sn, 2)],
            [E(Sn, 3), Ad(1), Cv(0)],
        ]
        mf = [qk(ks, Sn, vr(vC, 16)) for ks in range(8)] + \
             [f"{MFMA} {vr(vO+16*dt,16)}, {vr(vVf+16*m+4*dt,4)}, {vr(vP+4*m,4)}, {vr(vO+16*dt,16)}" for m in range(2) for dt in range(4)]
        A("s_barrier")
        nds = 0
        if CFG.get("nocomp"):
            for h in range(2): A.label(f"K_back{half}{h}")
            vq.clear(); kq_.clear()
        for g in range(0 if CFG.get("nocomp") else 16):
            A(mf[g])
            for x in gaps[g]:
                if isinstance(x, str): A(x)
                elif x[0] == "ds":
                    A.ds(x[1], "V0" if nds < 8 else ("V1" if nds < 16 else "K")); nds += 1
                elif x[0] == "wv": A.wait_ds(f"V{x[1]}")
                elif x[0] == "br":
                    A(f"s_cbranch_vccnz K_rare{half}{x[1]}"); A.label(f"K_back{half}{x[1]}")
        if half == 1: A(f"s_add_u32 s{sCnt}, s{sCnt}, 1\ns_cmp_lt_u32 s{sCnt}, 8")
        A.wait_ds()
        assert not vq and not kq_
    A("s_cbranch_scc1 K_loop")
    A(f"s_cmp_eq_u32 s{sRr}, 0\ns_cbranch_scc0 K_fin\ns_barrier")
    A.label("K_fin")
    A(f"v_mov_b32 v{vD}, v{vL}\ns_nop 1\nv_permlane32_swap_b32 v{vD}, v{vL}\ns_nop 1")
    A(f"v_add_f32 v{vL}, v{vL}, v{vD}\nv_rcp_f32 v{vL}, v{vL}\ns_nop 1\nv_mov_b32 v{vL+1}, v{vL}\ns_nop 3")
    for dt in range(4):
        for j in range(8): A(f"v_pk_mul_f32 {vr(vO+16*dt+2*j,2)}, {vr(vO+16*dt+2*j,2)}, {vr(vL,2)}")
        for j in range(8): A(f"v_cvt_pk_bf16_f32 v{vKf+8*dt+j}, v{vO+16*dt+2*j}, v{vO+16*dt+2*j+1}")
        A(f"s_mov_b32 s{sT0}, {dt*6144}")
        for m in range(2):
            if not CFG.get("nost"): A(f"buffer_store_dwordx4 {vr(vKf+8*dt+4*m,4)}, v{vSt}, s[{sWS}:{sWS+3}], s{sT0} offen offset:{m*1024} sc1")
    A(f"v_mov_b32 v{vD}, 1\nv_mov_b32 v{vD2}, 0")
    A(f"s_cmp_eq_u32 s{sRr}, 0\ns_cbranch_scc1 K_a2")
    stamp(A, 0)
    A(f"s_waitcnt vmcnt(0)\ns_mov_b64 exec, 1\nbuffer_store_dword v{vD}, v{vD2}, s[{sFL}:{sFL+3}], 0 offen sc1")
    if CFG["stamps"]:
        stamp(A, 1)
        A(f"s_cmp_eq_u32 s{sI}, 0\ns_cbranch_scc0 K_bend")
        stamp_flush(A, 2, 9)
        A.label("K_bend")
    A("s_endpgm")
    for half in range(2):
        Sc, Sn = vS + 16 * half, vS + 16 * (1 - half)
        for h in range(2):
            A.label(f"K_rare{half}{h}")
            el = list(range(8 * h, 16))
            A(f"v_max3_f32 v{vD}, v{Sc+el[0]}, v{Sc+el[1]}, 0")
            for i in range(2, len(el), 2): A(f"v_max3_f32 v{vD}, v{vD}, v{Sc+el[i]}, v{Sc+el[i+1]}")
            A(f"""v_mov_b32 v{vD2}, v{vD}
            s_nop 1
            v_permlane32_swap_b32 v{vD2}, v{vD}
            s_nop 1
            v_max_f32 v{vD}, v{vD}, v{vD2}
            v_sub_f32 v{vD2}, 0, v{vD}
            v_exp_f32 v{vD2}, v{vD2}
            s_nop 7
            s_nop 7""")
            for i in el: A(f"v_sub_f32 v{Sc+i}, v{Sc+i}, v{vD}")
            for i in range(16): A(f"v_sub_f32 v{vC+i}, v{vC+i}, v{vD}")
            for i in range(16): A(f"v_sub_f32 v{Sn+i}, v{Sn+i}, v{vD}")
            A(f"v_mul_f32 v{vL}, v{vD2}, v{vL}")
            for i in range(64): A(f"v_mul_f32 v{vO+i}, v{vD2}, v{vO+i}")
            for i in range(8 * h, 8 * h + 8, 2):
                A(E(Sc, i)); A(E(Sc, i + 1)); A("s_nop 0")
                if i & 7: A(Ad(i))
                A(Ad(i + 1)); A(Cv(i // 2))
            if h == 0: A(E(Sc, 8)); A(E(Sc, 9))
            A(f"s_nop 1\ns_branch K_back{half}{h}")

    A.label("K_w3")
    vFa3, vFd3 = 2, 3
    A("s_waitcnt lgkmcnt(0)")
    srd(A, sFL, "s18", "s19", WS_F2 + 65536)
    srd(A, sOUT, "s16", "s17", 256)
    A(f"""s_lshl2_add_u32 s{sT0}, s{sB}, s{sCT}
    s_lshl_b32 s{sT0}, s{sT0}, 9
    s_lshl4_add_u32 s{sT0}, s{sKQ}, s{sT0}
    s_add_u32 s{sT0}, s{sT0}, {WS_F2}
    s_lshl2_add_u32 s{sT1}, s{sB}, s{sKQ}
    s_lshl_b32 s{sT1}, s{sT1}, 8
    s_add_u32 s{sT2}, s{sT1}, {WS_F1}
    s_lshl4_add_u32 s{sT1}, s{sCT}, s{sT1}
    s_add_u32 s{sT1}, s{sT1}, {WS_F1 - 512}
    v_mov_b32 v1, s{sT0}
    v_mov_b32 v2, s{sT1}
    v_cmp_gt_u32 vcc, 4, v0
    v_mov_b32 v4, 0
    v_mov_b32 v5, 0
    v_cndmask_b32 v1, v2, v1, vcc
    v_lshl_add_u32 v1, v0, 7, v1
    v_mov_b32 v6, 0
    v_mov_b32 v7, 0
    s_mov_b64 exec, 63
    buffer_store_dwordx4 v[4:7], v1, s[{sFL}:{sFL+3}], 0 offen sc1
    s_mov_b64 exec, 1
    s_lshl_b32 s{sT0}, s{sB}, 2
    v_mov_b32 v2, s{sT0}
    v_mov_b32 v3, 1
    s_waitcnt vmcnt(0)
    buffer_atomic_add v3, v2, s[{sOUT}:{sOUT+3}], 0 offen sc1
    s_mov_b64 exec, -1
    s_mov_b32 s{sU2}, s{sT2}""")
    barriers(A, 10 + 2 + 8, "W3_i0")
    A(f"s_mov_b32 s{sT3}, 0\nv_mov_b32 v2, s{sT0}")
    A.label("W3_cnt")
    A(f"""buffer_load_dword v3, v2, s[{sOUT}:{sOUT+3}], 0 offen sc1
    s_add_u32 s{sT3}, s{sT3}, 1
    s_waitcnt vmcnt(0)
    v_readfirstlane_b32 s{sT1}, v3
    s_cmp_ge_u32 s{sT3}, {CFG['spin']}
    s_cbranch_scc1 W3_cnt_done
    s_cmp_ge_u32 s{sT1}, 16
    s_cbranch_scc0 W3_cnt""")
    A.label("W3_cnt_done")
    A(f"""v_mov_b32 v4, 0
    v_lshlrev_b32 v1, 2, v0
    v_and_b32 v1, 31, v1
    v_add_u32 v1, {SYNC}, v1
    ds_write_b32 v1, v4
    v_and_b32 v2, 15, v0
    v_lshlrev_b32 v2, 2, v2
    v_add_u32 v{vFa3}, s{sU2}, v2""")
    barriers(A, F - 2 - 8 + 1, "W3_i1")
    A(f"buffer_load_dword v{vFd3}, v{vFa3}, s[{sFL}:{sFL+3}], 0 offen sc1")
    A("s_barrier")
    stamp(A, 5)
    poll16(A, "W3_poll", vFa3, vFd3, "0x7777", first_issued=True)
    stamp(A, 6)
    A("s_barrier\ns_barrier")
    A("s_branch K_op")

    A.label("K_a2")
    barriers(A, DR - 16, "A_i0")
    A(f"s_waitcnt vmcnt(0)\ns_mov_b64 exec, 1\nbuffer_store_dword v{vD}, v{vD2}, s[{sFL}:{sFL+3}], 0 offen sc1\ns_mov_b64 exec, -1")
    stamp(A, 5)
    stamp(A, 6)
    if CFG["prio"]: A("s_setprio 0")
    barriers(A, F + 1 - DR, "A_i1")

    A.label("K_op")
    vAcc, FA0, vA, vB, vSy2, vJ, vRv = 64, 128, 2, 6, 10, 11, 176
    tab = [sum(sig[j + 8 * k] << (4 * j) for j in range(8)) for k in range(4)]
    A(f"""s_mov_b32 s{sTab}, {tab[0]:#x}
    s_mov_b32 s{sTab+1}, {tab[1]:#x}
    s_mov_b32 s{sTab2}, {tab[2]:#x}
    s_mov_b32 s{sTab2+1}, {tab[3]:#x}
    s_mov_b32 s{sCur}, {sig[0]*CH}
    s_mov_b32 s{sJ}, 0
    s_mov_b32 s{sR}, 0
    v_lshl_add_u32 v1, v{vHi}, 3, v{vR}
    v_mul_u32_u24 v1, 320, v1
    v_add3_u32 v1, v1, v{vCp}, s{sCur}
    v_add_u32 v15, {sig[0]*CH + 10240}, v{vSt}
    s_lshl2_add_u32 s{sT0}, s{sW}, {SYNC + 16}
    v_mov_b32 v{vSy2}, {SYNC}
    v_mov_b32 v{vSy2+2}, s{sT0}
    v_mov_b32 v{vJ}, 0""")
    for i in range(64): A(f"v_mov_b32 v{vAcc+i}, 0")
    for i in range(20): A(f"v_mov_b32 v{FA0+20+i}, 0")
    A(f"""s_lshl2_add_u32 s{sT0}, s{sB}, s{sCT}
    s_lshl_b32 s{sT1}, s{sT0}, 18
    s_add_u32 s{sT1}, s{sT1}, {WS_P}
    s_lshl_b32 s{sT0}, s{sT0}, 9
    s_add_u32 s{sT0}, s{sT0}, {WS_F2}""")
    srd_off(A, sWS, 18, sT1, 4 * 65536)
    srd_off(A, sFL, 18, sT0, 512)
    srd(A, sOUT, "s14", "s15", 1966080)
    A(f"s_cmp_eq_u32 s{sW}, 3\ns_cbranch_scc1 K_op1")
    for role in (0, 1):
        nA, nB = (4, 1) if role == 0 else (1, 3)
        nT = max(nA, nB)
        FAo = [FA0, FA0 + 20]; FBo = [FA0 + 4 * nA, FA0 + 20 + 4 * nA]
        sOwn = 20
        if role == 0:
            for s in range(4):
                A(f"s_add_u32 s{sOwn+s}, s{sKQ}, {s}\ns_and_b32 s{sOwn+s}, s{sOwn+s}, 3\ns_lshl_b32 s{sT0}, s{sOwn+s}, 6\nv_add_u32 v{vA+s}, s{sT0}, v1")
            A(f"s_lshl_b32 s{sT0}, s{sW}, 11\nv_add_u32 v{vB}, s{sT0}, v15")
        else:
            A.label("K_op1")
            A(f"v_add_u32 v{vA}, 256, v1\ns_cmp_eq_u32 s{sKQ}, 3\ns_cselect_b32 s{sOwn}, 0, s{sKQ}")
            for s in range(3):
                if s: A(f"s_add_u32 s{sOwn+s}, s{sOwn+s-1}, 1\ns_cmp_eq_u32 s{sOwn+s}, 3\ns_cselect_b32 s{sOwn+s}, 0, s{sOwn+s}")
                A(f"s_lshl_b32 s{sT0}, s{sOwn+s}, 11\nv_add_u32 v{vB+s}, s{sT0}, v15")
        A.label(f"O_loop{role}")
        A(f"s_cmp_lt_u32 s{sJ}, {n1}\ns_cbranch_scc0 O_tail{role}\ns_barrier")
        A.label(f"O_go{role}")
        def rd(ks, Fi):
            for t in range(nB):
                A.ds(f"ds_read_b128 {vr(FBo[Fi]+4*t,4)}, v{vB+t} offset:{ks*1024}", ("F", Fi))
            for t in range(nA):
                for p in range(2):
                    A.ds(f"ds_read_b64_tr_b16 {vr(FAo[Fi]+4*t+2*p,2)}, v{vA+t} offset:{(16*ks+4*p)*320}", ("F", Fi))
        def mmo(Fi):
            for t in range(nT):
                a = FAo[Fi] + (4 * t if role == 0 else 0); b = FBo[Fi] + (0 if role == 0 else 4 * t)
                A(f"{MFMA} {vr(vAcc+16*t,16)}, {vr(a,4)}, {vr(b,4)}, {vr(vAcc+16*t,16)}")
        A.lds_q = ["P"]
        rd(0, 0); mmo(1); rd(1, 1)
        A(f"""s_add_u32 s{sJ}, s{sJ}, 1
        s_lshr_b64 s[{sTab}:{sTab+1}], s[{sTab}:{sTab+1}], 4
        s_cmp_eq_u32 s{sJ}, 16
        s_cselect_b64 s[{sTab}:{sTab+1}], s[{sTab2}:{sTab2+1}], s[{sTab}:{sTab+1}]
        s_and_b32 s{sT0}, s{sTab}, 15
        s_lshl_b32 s{sT0}, s{sT0}, 14
        s_sub_u32 s{sDelta}, s{sT0}, s{sCur}
        s_mov_b32 s{sCur}, s{sT0}""")
        A.wait_ds(("F", 0))
        mmo(0)
        for t in range(nA): A(f"v_add_u32 v{vA+t}, s{sDelta}, v{vA+t}")
        for t in range(nB): A(f"v_add_u32 v{vB+t}, s{sDelta}, v{vB+t}")
        A(f"v_add_u32 v{vJ}, 1, v{vJ}")
        A.wait_ds()
        A(f"ds_write_b32 v{vSy2+2}, v{vJ}")
        if CFG["stamps"]:
            A(f"s_cmp_eq_u32 s{sJ}, 16\ns_cbranch_scc0 O_ns{role}")
            stamp(A, 0)
            A.label(f"O_ns{role}")
        A(f"s_cmp_lt_u32 s{sJ}, 32\ns_cbranch_scc1 O_loop{role}")
        mmo(1)
        A(f"s_lshl2_add_u32 s{sT3}, s{sKQ}, s{sW}\ns_lshl_b32 s{sT2}, s{sT3}, 12")
        A(f"v_and_b32 v1, 15, v0\nv_lshlrev_b32 v1, 2, v1\nv_mov_b32 v14, 1")
        A(f"v_mov_b32 v13, s{sOwn}")
        for s in range(1, nT): A(f"v_writelane_b32 v13, s{sOwn+s}, {s}")
        A(f"s_lshl_b32 s{sT3}, s{sT3}, 2\nv_lshlrev_b32 v13, 7, v13\nv_add_u32 v13, s{sT3}, v13")
        stamp(A, 1)
        def send(s):
            A(f"s_lshl_b32 s{sT0}, s{sOwn+s}, 16\ns_add_u32 s{sT0}, s{sT0}, s{sT2}")
            for jj in range(4):
                A(f"buffer_store_dwordx4 {vr(vAcc+16*s+4*jj,4)}, v{vSt}, s[{sWS}:{sWS+3}], s{sT0} offen offset:{jj*1024} sc1")
        if role == 0:
            A("s_nop 3")
            for s in (1, 2, 3): send(s)
            A("s_mov_b64 s[24:25], 14")
        else:
            A("s_nop 3")
            send(1); send(2)
            A(f"s_mov_b64 s[24:25], 6\ns_cmp_eq_u32 s{sKQ}, 3\ns_cbranch_scc0 O_s0\ns_mov_b64 s[24:25], 7")
            send(0)
            A.label("O_s0")
        A(f"""s_lshl_b32 s{sT0}, s{sKQ}, 7
        v_add_u32 v1, s{sT0}, v1
        s_lshl_b32 s{sT1}, 0x1111, s{sW}
        s_lshl_b32 s{sT0}, s{sKQ}, 2
        s_lshl_b32 s{sT0}, 15, s{sT0}
        s_andn2_b32 s26, s{sT1}, s{sT0}
        v_mul_u32_u24 v12, 1280, v{vN}
        v_lshl_add_u32 v12, v{vHi}, 4, v12
        s_mul_i32 s27, s{sB}, 122880
        s_mul_i32 s{sT0}, s{sCT}, 320
        s_add_u32 s27, s27, s{sT0}""")
        if role == 0:
            A(f"s_mul_i32 s{sT0}, s{sW}, 40960\ns_add_u32 s27, s27, s{sT0}\ns_lshl_b32 s{sT0}, s{sKQ}, 6\ns_add_u32 s27, s27, s{sT0}")
        else:
            A(f"s_mul_i32 s{sT0}, s{sKQ}, 40960\ns_add_u32 s27, s27, s{sT0}\ns_add_u32 s27, s27, 256")
        A(f"s_waitcnt vmcnt(0)\ns_mov_b64 exec, s[24:25]\nbuffer_store_dword v14, v13, s[{sFL}:{sFL+3}], 0 offen sc1\ns_mov_b64 exec, -1")
        stamp(A, 2)
        if role == 1:
            A(f"s_cmp_eq_u32 s{sKQ}, 3\ns_cbranch_scc0 O_rcv\ns_endpgm")
        else:
            A("s_branch O_rcv")
        A.label(f"O_tail{role}")
        A(f"s_cmp_gt_u32 s{sR}, s{sJ}\ns_cbranch_scc1 O_go{role}")
        A(f"""ds_read_b32 v14, v{vSy2}
        s_waitcnt lgkmcnt(0)
        v_readfirstlane_b32 s{sR}, v14
        s_branch O_tail{role}""")
    A.label("O_rcv")
    poll16(A, "O_poll", 1, 14, "s26")
    stamp(A, 3)
    A(f"s_lshl_b32 s{sT1}, s{sKQ}, 16\ns_lshl_b32 s{sT0}, s{sW}, 12\ns_add_u32 s{sT1}, s{sT1}, s{sT0}")
    for s in range(1, 4):
        A(f"s_add_u32 s{sT0}, s{sKQ}, {s}\ns_and_b32 s{sT0}, s{sT0}, 3\ns_lshl_b32 s{sT0}, s{sT0}, 14\ns_add_u32 s{sT0}, s{sT0}, s{sT1}")
        for jj in range(4):
            A.vm(f"buffer_load_dwordx4 {vr(vRv+16*(s-1)+4*jj,4)}, v{vSt}, s[{sWS}:{sWS+3}], s{sT0} offen offset:{jj*1024} sc1", s)
    for s in range(1, 4):
        A.wait_vm(s)
        for j in range(8): A(f"v_pk_add_f32 {vr(vAcc+2*j,2)}, {vr(vAcc+2*j,2)}, {vr(vRv+16*(s-1)+2*j,2)}")
    for j in range(8): A(f"v_cvt_pk_bf16_f32 v{24+j}, v{vAcc+2*j}, v{vAcc+2*j+1}")
    for m in range(2):
        A(f"buffer_store_dwordx4 {vr(24+4*m,4)}, v12, s[{sOUT}:{sOUT+3}], s27 offen offset:{m*32}")
    if CFG.get("padto"):
        A.label("PAD")
        A(f"s_memrealtime s[96:97]\ns_waitcnt lgkmcnt(0)\ns_sub_u32 s96, s96, s98\ns_cmp_lt_u32 s96, {CFG['padto']}\ns_cbranch_scc1 PAD")
    if CFG["stamps"]:
        A("s_waitcnt vmcnt(0)")
        stamp(A, 4)
        A(f"s_cmp_eq_u32 s{sW}, 0\ns_cbranch_scc0 O_e1")
        stamp_flush(A, 6, 11)
        A("s_endpgm")
        A.label("O_e1")
        A(f"s_cmp_eq_u32 s{sW}, 3\ns_cbranch_scc0 O_e2")
        A(f"s_mov_b64 s[{sSt}:{sSt+1}], s[{sSt+10}:{sSt+11}]\ns_mov_b64 s[{sSt+2}:{sSt+3}], s[{sSt+12}:{sSt+13}]")
        stamp_flush(A, 2, 17)
        A.label("O_e2")
    A("s_endpgm")
    A(f""".section .rodata,"a"
.p2align 6
.amdhsa_kernel {L}
.amdhsa_next_free_vgpr 256
.amdhsa_next_free_sgpr 100
.amdhsa_accum_offset 256
.amdhsa_group_segment_fixed_size 0
.amdhsa_kernarg_size 64
.amdhsa_user_sgpr_count 2
.amdhsa_user_sgpr_kernarg_segment_ptr 1
.amdhsa_system_sgpr_workgroup_id_x 1
.end_amdhsa_kernel""")

def main():
    A = Asm()
    A("; @launch grid=(256,1,1) block=(512,1,1) lds=163840")
    A('.amdgcn_target "amdgcn-amd-amdhsa--gfx950"\n.text')
    kernel(A)
    t = A.text()
    probs = check_hazards(t)
    for p in probs[:40]: print(p)
    print("hazards:", len(probs), "plan:", chunk_plan())
    open(sys.argv[1], "w").write(t)
    assert all((p * 3277) >> 16 == p // 20 for p in range(640))
main()
```

```python
import re

class Asm:
    def __init__(self):
        self.lines = []
        self.lds_q = []
        self.vm_q = []
    def __call__(self, s):
        for ln in s.split("\n"):
            ln = ln.strip()
            if ln:
                self.lines.append(ln)
    def label(self, name):
        self.lines.append(name + ":")
    def comment(self, s):
        self.lines.append("; " + s)
    def ds(self, s, tag=None):
        self(s); self.lds_q.append(tag)
    def wait_ds(self, tag=None):
        if tag is None:
            n = 0
        else:
            idx = [i for i, t in enumerate(self.lds_q) if t == tag]
            if not idx:
                return
            n = len(self.lds_q) - 1 - idx[-1]
        n = min(n, 15)
        self(f"s_waitcnt lgkmcnt({n})")
        self.lds_q = self.lds_q[len(self.lds_q) - n:] if n else []
    def vm(self, s, tag=None):
        self(s); self.vm_q.append(tag)
    def wait_vm(self, tag=None):
        if tag is None:
            n = 0
        else:
            idx = [i for i, t in enumerate(self.vm_q) if t == tag]
            if not idx:
                return
            n = len(self.vm_q) - 1 - idx[-1]
        n = min(n, 63)
        self(f"s_waitcnt vmcnt({n})")
        self.vm_q = self.vm_q[len(self.vm_q) - n:] if n else []
    def text(self):
        out = []
        for ln in self.lines:
            if ln.endswith(":") or ln.startswith(".") or ln.startswith(";"):
                out.append(ln)
            else:
                out.append("    " + ln)
        return "\n".join(out) + "\n"

def vr(base, n=1):
    return f"v{base}" if n == 1 else f"v[{base}:{base+n-1}]"
def sr(base, n=1):
    return f"s{base}" if n == 1 else f"s[{base}:{base+n-1}]"

_REG = re.compile(r"^(-|abs\()?(v|s|a)(\d+|\[(\d+):(\d+)\])\)?$")
def regs_of(tok):
    tok = tok.strip()
    if tok in ("vcc", "vcc_lo", "vcc_hi"): return {"vcc"}
    if tok in ("exec", "exec_lo", "exec_hi"): return {"exec"}
    if tok == "m0": return {"m0"}
    m = _REG.match(tok)
    if not m: return set()
    k = m.group(2)
    if m.group(4) is not None:
        return {f"{k}{i}" for i in range(int(m.group(4)), int(m.group(5)) + 1)}
    return {f"{k}{m.group(3)}"}

TRANS = ("v_exp_f32", "v_log_f32", "v_rcp_f32", "v_rsq_f32", "v_sqrt_f32", "v_sin_f32", "v_cos_f32")
class Ins:
    def __init__(self, text, idx):
        self.text = text; self.idx = idx
        t = text.split(";")[0].strip()
        parts = t.split(None, 1)
        self.mn = parts[0]
        ops = []
        if len(parts) > 1:
            ops = [p.strip() for p in parts[1].split(",")]
            last = ops[-1].split()
            ops[-1] = last[0]; self.mods = last[1:]
        else:
            self.mods = []
        self.ops = ops
        mn = self.mn
        self.base = re.sub(r"_e(32|64)$", "", mn)
        self.is_mfma = mn.startswith("v_mfma")
        self.is_valu = mn.startswith("v_") and not self.is_mfma
        self.is_ds = mn.startswith("ds_")
        self.is_vmem = mn.startswith("buffer_") or mn.startswith("global_")
        self.is_salu = mn.startswith("s_")
        self.w = set(); self.r = set()
        R = [regs_of(o) for o in ops]
        if self.is_mfma:
            self.w = R[0]; self.a = R[1]; self.b = R[2]; self.c = R[3]; self.r = R[1] | R[2] | R[3]
            self.passes = 8 if "32x32x16" in mn else 4
        elif self.is_valu:
            if self.base.startswith("v_cmp"):
                self.w = R[0]; self.r = set().union(*R[1:])
                if self.base.startswith("v_cmpx"): self.w |= {"exec"}
            elif self.base.startswith("v_permlane") and "swap" in self.base:
                self.w = R[0] | R[1]; self.r = R[0] | R[1]
            elif self.base in ("v_add_co_u32", "v_sub_co_u32", "v_addc_co_u32", "v_subb_co_u32"):
                self.w = R[0] | R[1]; self.r = set().union(*R[2:])
            elif self.base == "v_nop":
                pass
            else:
                self.w = R[0]; self.r = set().union(*R[1:]) if len(R) > 1 else set()
                if self.base in ("v_fmac_f32", "v_writelane_b32", "v_pk_fmac_f16"): self.r |= R[0]
                if self.base == "v_cndmask_b32" and len(ops) == 3: self.r |= {"vcc"}
        elif self.is_ds:
            if "read" in mn or "permute" in mn or "swizzle" in mn:
                self.w = R[0]; self.r = set().union(*R[1:]) if len(R) > 1 else set()
            else:
                self.r = set().union(*R)
        elif self.is_vmem:
            lds = "lds" in self.mods
            if "load" in mn and not lds:
                self.w = R[0]; self.r = set().union(*R[1:])
            elif "load" in mn:
                self.r = set().union(*R) | {"m0"}
            elif "atomic" in mn:
                self.r = set().union(*R)
                if "sc0" in self.mods: self.w = R[0]
            elif mn.startswith("buffer_wbl2") or mn.startswith("buffer_inv"):
                pass
            else:
                self.r = set().union(*R)
                if mn.startswith("buffer_"): self.data = R[0]
                else: self.data = R[1]
        elif self.is_salu:
            if mn.startswith(("s_cmp", "s_cbranch", "s_branch", "s_waitcnt", "s_barrier", "s_nop", "s_endpgm", "s_setprio", "s_sleep", "s_bitcmp")):
                self.r = set().union(*R) if R else set()
            else:
                self.w = R[0] if R else set(); self.r = set().union(*R[1:]) if len(R) > 1 else set()
                if "saveexec" in mn: self.w |= {"exec"}
        self.states = 1
        if mn == "s_nop": self.states = int(ops[0]) + 1

def need(p, c):
    n = 0
    isv = lambda s: {x for x in s if x[0] in "va" and x not in ("vcc",)}
    iss = lambda s: {x for x in s if (x[0] == "s") or x == "vcc"}
    if p.is_mfma:
        D = p.w
        big = {8: 12, 4: 8}[p.passes]
        if c.is_mfma:
            if (c.a | c.b) & D: n = max(n, big)
            if c.c & D and not (c.c == D and c.passes == p.passes): n = max(n, big - 2)
            if c.w & D and not (c.c == D and c.w == D): n = max(n, big)
        elif c.is_valu or c.is_ds or c.is_vmem:
            if (c.r | c.w) & D: n = max(n, big)
        if c.is_valu and c.w & p.c: n = max(n, {8: 7, 4: 3}[p.passes])
    if p.is_valu:
        wv = isv(p.w); ws = iss(p.w)
        if c.is_mfma and c.r & wv: n = max(n, 2)
        if c.is_valu:
            if c.base.startswith("v_permlane") and c.r & wv: n = max(n, 2)
            if "dpp" in c.text or "row_" in c.text:
                if c.r & wv: n = max(n, 2)
            if c.base in ("v_readlane_b32", "v_readfirstlane_b32") and c.r & wv: n = max(n, 1)
            if c.r & ws: n = max(n, 2)
            if c.base in ("v_readlane_b32", "v_writelane_b32") and len(c.ops) > 2 and regs_of(c.ops[2]) & ws: n = max(n, 4)
            if p.base in TRANS and c.base not in TRANS and c.r & wv: n = max(n, 1)
            if p.base in TRANS and c.base in TRANS and c.r & wv: n = max(n, 1)
            if "exec" in p.w and (c.base.startswith("v_permlane") or c.base.startswith("v_read")): n = max(n, 4)
        if c.is_vmem and c.r & ws: n = max(n, 5)
        if c.is_mfma and "exec" in p.w: n = max(n, 4)
    if p.is_salu and "m0" in p.w and c.is_vmem and "m0" in c.r: n = max(n, 1)
    if p.is_vmem and hasattr(p, "data") and len(p.data) >= 3 and (c.is_valu or c.is_mfma or c.is_ds or c.is_vmem) and c.w & p.data: n = max(n, 2)
    return n

def check_hazards(text, maxwin=14):
    ins = []; labels = {}
    for ln in text.split("\n"):
        s = ln.split(";")[0].strip()
        if not s or s.startswith("."): continue
        if s.endswith(":"):
            labels[s[:-1]] = len(ins); continue
        ins.append(Ins(s, len(ins)))
    def succ(i):
        x = ins[i]
        if x.mn in ("s_endpgm", "s_setpc_b64"): return []
        if x.mn == "s_branch": return [labels[x.ops[0]]]
        if x.mn == "s_call_b64": return [labels[x.ops[1]], i + 1]
        out = [i + 1] if i + 1 < len(ins) else []
        if x.mn.startswith("s_cbranch"): out.append(labels[x.ops[0]])
        return out
    probs = []
    for p in ins:
        if not (p.is_mfma or p.is_valu or (p.is_salu and "m0" in p.w) or (p.is_vmem and hasattr(p, "data"))): continue
        stack = [(j, 0, p.passes - 1 if p.is_mfma else 0) for j in succ(p.idx)]
        seen = {}
        while stack:
            j, d, m = stack.pop()
            if d >= maxwin or j >= len(ins): continue
            if j in seen and seen[j] <= (d, m): continue
            seen[j] = (d, m)
            c = ins[j]
            n = need(p, c)
            if n > d:
                probs.append(f"HAZARD need {n} have {d}: [{p.idx}] {p.text}  ->  [{c.idx}] {c.text}")
            if c.is_mfma and p.is_mfma:
                d = max(d, m); m = d + c.passes
            for k in succ(j): stack.append((k, d + c.states, m))
    return probs
```

```python
BARS = [f"Q{j}" for j in range(10)] + list(range(-2, 33)) + ["T0", "Tb", "Tc", "Td", "Te"] + [f"T{k}" for k in range(1, 7)]
BI = {n: i for i, n in enumerate(BARS)}
BI["start"] = -1

KSZ, VSZ, XSZ, WSZ, WOSZ, OSZ = 8448, 8704, 12288, 17408, 10240, 6144
VBASE = 5 * KSZ
def KR(t): return KSZ * ((t + 3) % 5)
def VR(t): return VBASE + VSZ * (t % 5)
XB1, XB2 = 61184, 137984
XQ = [XB2, XB2 + XSZ, XB1, XB1 + XSZ]
WSL = dict(A=85760, B=103168, C=120576, D=137984)
WQ = [WSL["C"], WSL["A"], WSL["B"]]
PB = 98304
OWN2 = 59648

class Sched:
    def __init__(self, C):
        self.C = C
        self.q2e = C["q2e"]
        self.w2a = [WSL[c] for c in C["w2s"]]
        self.ope = C["ope"]
        self.cep = {j: e for e, l in self.ope.items() for j in l}
        assert sorted(self.cep) == list(range(32))
        wo, oo = {}, {}
        for j in range(16): wo[j] = PB + 16384 * (j % 4); oo[j] = wo[j] + WOSZ
        for j in range(16, 20): wo[j] = WOSZ * (j - 16); oo[j] = OWN2 + OSZ * (j - 16)
        wo.update({20: 88064, 21: PB, 22: PB + WOSZ, 23: PB + 2 * WOSZ, 24: PB + 3 * WOSZ, 25: 0, 26: WOSZ, 27: 2 * WOSZ, 28: 3 * WOSZ,
                   29: 88064, 30: PB, 31: PB + WOSZ})
        for k in range(3): oo[20 + k] = 40960 + OSZ * k
        for k in range(4): oo[23 + k] = PB + 4 * WOSZ + OSZ * k
        for k in range(4): oo[27 + k] = OWN2 + OSZ * k
        oo[31] = 40960
        self.wo, self.oo = wo, oo
        ob = {}
        for j in range(10):
            ob["X", j] = (XQ[j % 4], XSZ, [f"Q{j}"] + ([self.q2e[j - 8]] if j >= 8 else []))
            ob["W", j] = (WQ[j % 3], WSZ, [f"Q{j}"])
            ob["W2", j] = (self.w2a[j], WSZ, [self.q2e[j]])
        for t in range(32):
            ob["K", t] = (KR(t), KSZ, [t - 2])
            ob["V", t] = (VR(t), VSZ, [t + 1])
            ob["wo", t] = (wo[t], WOSZ, [self.cep[t]])
            ob["O", t] = (oo[t], OSZ, [self.cep[t]])
        self.ob = ob
        self.ninst = {"X": 12, "W": 16, "W2": 16, "K": 8, "V": 8, "wo": 10, "O": 6}
        self.issue = {}
        for j in range(4):
            self.issue["O", j] = BI[16]; self.issue["O", 16 + j] = BI[32]
            assert BI[self.cep[j]] > BI[16] and BI[self.cep[16 + j]] > BI[32]
        self.place()
        self.check()

    def first(self, o): return min(BI[e] for e in self.ob[o][2])
    def last(self, o): return max(BI[e] for e in self.ob[o][2])
    def free(self, o):
        a, n, _ = self.ob[o]
        f = -1
        for p, (b, m, _) in self.ob.items():
            if p != o and a < b + m and b < a + n and self.first(p) < self.first(o):
                assert self.last(p) < self.first(o), (p, o)
                f = max(f, self.last(p) + 1)
        return f

    def place(self):
        C = self.C
        q = C["queue"]
        pos, cum = {}, 0
        for it in q:
            if it[0] != "ctl": cum += self.ninst[it[0]]
            pos[it] = cum
        data = [it for it in q if it[0] != "ctl"]
        assert len(set(data)) == len(data) and set(data) | set(self.issue) == set(self.ob), set(self.ob) - set(data) - set(self.issue)
        self.iss = {i: [] for i in range(-1, len(BARS))}
        k = 0
        for n in range(len(BARS)):
            needpos = max([pos[it] for it in data if self.first(it) <= n] + [0])
            win = C["win"](BARS[n])
            while k < len(q):
                it = q[k]
                nb = BI[it[2]] if it[0] == "ctl" else max(self.free(it), BI[C["nb"].get(it, "start")])
                if nb > n - 1 or pos[it] > needpos + win: break
                self.iss[n - 1].append(it); self.issue[it] = n - 1; k += 1
            for it in data:
                if self.first(it) <= n: assert it in self.issue, ("late", it, BARS[n], "blocked by", q[k])
        assert k == len(q)

    def check(self):
        for o in self.ob:
            a, n, _ = self.ob[o]
            assert a % 16 == 0 and a + n <= 163840
            assert self.issue[o] >= self.free(o) and self.issue[o] < self.first(o), o
            for p, (b, m, _) in self.ob.items():
                if p != o and a < b + m and b < a + n:
                    assert self.last(p) < self.issue[o] or self.last(o) < self.issue[p], (o, p)

    def show(self):
        for i in range(-1, len(BARS)):
            if self.iss[i]:
                print(("start" if i < 0 else str(BARS[i])).rjust(5), " ".join(f"{x[0]}{x[1]}" if x[0] != "ctl" else f"<{x[1]}>" for x in self.iss[i]))

def default_cfg(o):
    q0 = o["q0"]
    q2e = o.get("q2e") or [q0, q0 + 1, q0 + 2, q0 + 4, q0 + 5, q0 + 6, q0 + 7, q0 + 8, q0 + 9, q0 + 10]
    w2s = o.get("w2s") or "ABCABDCABD"
    F = o["F"]
    ope = o.get("ope") or {17: [0, 1], 18: [2, 3], F + 2: [4, 5], F + 3: [6, 7], F + 6: [8, 9], F + 7: [10, 11],
                           "T0": [12, 13], "Tb": [14, 15], "Tc": [16, 17], "Td": [18, 19]}
    ope = dict(ope)
    for k in range(6): ope[f"T{k+1}"] = [20 + 2 * k, 21 + 2 * k]
    X = lambda j: ("X", j); W = lambda j: ("W", j); K = lambda t: ("K", t); V = lambda t: ("V", t)
    W2 = lambda i: ("W2", i); WO = lambda j: ("wo", j); O = lambda j: ("O", j)
    def parse(s):
        r = []
        for t in s.split():
            if t[0] == "<": r.append(("ctl", t[1:-1], "start"))
            elif t[0] == "U": r.append(W2(int(t[1:])))
            else: r.append((t[0], int(t[1:])))
        return r
    QO = {0: "X0 W0 X1 X2 <kvset> K0 W1 W2 X3 W3 X4 W4 <late> X5 W5 X6 W6 X7 W7 X8 W8 X9 W9 K1 K2 V0 K3 U0 U1 V1 K4 V2 K5 U2 V3 K6",
          1: "X0 W0 X1 W1 X2 W2 <kvset> X3 W3 X4 W4 <late> X5 W5 X6 W6 K0 K1 K2 V0 X7 W7 X8 W8 X9 W9 K3 V1 K4 V2 U0 U1 U2 K5 V3 K6",
          2: "X0 W0 X1 X2 <kvset> K0 W1 W2 X3 W3 X4 W4 <late> X5 W5 X6 W6 X7 W7 K1 K2 V0 K3 X8 W8 X9 W9 U0 V1 K4 V2 K5 U1 U2 V3 K6",
          3: "X0 W0 X1 X2 <kvset> K0 K1 W1 W2 X3 W3 X4 W4 <late> X5 W5 X6 W6 X7 W7 X8 W8 X9 W9 K2 V0 K3 V1 U0 U1 K4 V2 K5 U2 V3 K6"}
    q = parse(o.get("qs") or QO[o["qord"]])
    H = {e: [] for e in range(2, 30, 2)}
    for e, l in (o.get("w2h") or {2: [3, 4], 4: [5, 6], 6: [7, 8], 8: [9]}).items(): H[e + q0] += [W2(i) for i in l]
    H[6] = [("ctl", "cntI", 5)] + H[6]
    H[8] = H[8] + [("ctl", "cntC", 7)]
    for e, l in (o.get("woh") or {12: [0, 1], 14: [2, 3, 20]}).items(): H[e] += [WO(j) for j in l]
    pre = {e: [] for e in range(2, 30, 2)}
    H[F - 2] += [("ctl", "f1I", F - 1 + o.get("fo", 0))]
    H[F] += [WO(4), WO(5), WO(6), WO(7), ("ctl", "f1C", F - 1), O(4), O(5), O(6), O(7)]
    H[F + 4] += [WO(8), WO(9), WO(10), WO(11), O(8), O(9), O(10), O(11)]
    post = {e: [] for e in range(2, 30, 2)}
    l = H[F - 2]; post[F - 2] = [x for x in l if x[0] == "ctl" and x[1] == "f1I"]; H[F - 2] = [x for x in l if x not in post[F - 2]]
    for e in range(2, 30, 2):
        q += H[e]
        g = [V(e + 2), K(e + 5), V(e + 3), K(e + 6)]
        g = [x for x in g if x[1] <= 31]
        q += g[:2] + post[e] + g[2:]
    q += [WO(12), O(12), WO(13), O(13), WO(14), O(14), WO(15), O(15), WO(16), WO(17), WO(18), WO(19)]
    q += [WO(j) for j in range(21, 29)] + [("ctl", "spin2", "Te")] + [O(j) for j in range(20, 31)] + [WO(29), WO(30), O(31), WO(31)]
    def win(b):
        if isinstance(b, str) and b[0] == "Q": return o["winQ"]
        if isinstance(b, str) or b > 28: return 10000
        return o["win"]
    return dict(q2e=q2e, w2s=w2s, ope=ope, queue=q, win=win, nb=o.get("nb", {}))

if __name__ == "__main__":
    import sys
    o = dict(q0=0, F=20, qord=0, winQ=40, win=32)
    for a in sys.argv[1:]:
        k, v = a.split("=", 1); o[k] = eval(v)
    s = Sched(default_cfg(o)); s.show()
```

```python
import sys, math, struct
sys.path.insert(0, "gen")
from asmlib import *
from sched3 import *

NAME = "standalone__gqa_block_cached__near_ridge"
CFG = dict(nt=1, stamps=0, lst=0, rot=1, prio=1, spin=200000, DR=18, cycA=('Q4','Q9'), cycB=(29,31), BE='Td', drot=1, psh=1,
           q0=0, F=20, qord=0, winQ=40, win=32)
for a in sys.argv[2:]:
    k, v = a.split("=", 1)
    CFG[k] = eval(v)
S = Sched(default_cfg(CFG))

MFMA = "v_mfma_f32_32x32x16_bf16"
CSC = math.log2(math.e) / math.sqrt(128.0)
def f2u(x): return struct.unpack("<I", struct.pack("<f", x))[0]
THR = 1024.0

WS_P = 16 << 20
WS_F1 = 32 << 20
WS_F2 = WS_F1 + 65536
WS_STAMP = 128 << 20
NST = 24

sW = 3
sX, sWQ, sK, sV, sWS, sWO, sOUT = 20, 24, 28, 32, 36, 40, 44
sB, sKQ, sCT, sH0 = 48, 49, 50, 51
sT0, sT1, sT2, sT3 = 52, 53, 54, 55
sI, sRr, sCnt, sId = 56, 57, 58, 59
sCX, sCW, sCW2, sMask = 56, 57, 58, 59
sDt, sPp = 60, 64
sOw = 60
sThr, sCs = 68, 70
sFL = 72
sSt = 76

def srd(A, d, lo, hi, n):
    A(f"s_mov_b32 s{d}, {lo}\ns_mov_b32 s{d+1}, {hi}\ns_mov_b32 s{d+2}, {n}\ns_mov_b32 s{d+3}, 0x20000")
def srd_off(A, d, p, soff, n):
    A(f"s_add_u32 s{d}, s{p}, s{soff}\ns_addc_u32 s{d+1}, s{p+1}, 0\ns_mov_b32 s{d+2}, {n}\ns_mov_b32 s{d+3}, 0x20000")

def stamp(A, i):
    if CFG["stamps"]: A(f"s_memrealtime s[{sSt+2*i}:{sSt+2*i+1}]")
def stamp_flush(A, n, slot0, sSt=sSt):
    if not CFG["stamps"]: return
    A("s_waitcnt lgkmcnt(0) vmcnt(0)")
    A(f"s_mov_b32 s{sT0}, {WS_STAMP}")
    srd_off(A, sOUT, 18, sT0, 0x100000)
    A(f"s_mul_i32 s{sT0}, s2, {NST*8}\ns_add_u32 s{sT0}, s{sT0}, {slot0*8}")
    A(f"s_mov_b64 exec, 1\nv_mov_b32 v1, s{sT0}")
    for i in range(n):
        A(f"v_mov_b32 v2, s{sSt+2*i}\nv_mov_b32 v3, s{sSt+2*i+1}")
        A(f"buffer_store_dwordx2 v[2:3], v1, s[{sOUT}:{sOUT+3}], 0 offen offset:{8*i}")
        A("s_nop 1")
    A("s_mov_b64 exec, -1")

LST = [0]
LSTN = []
def lstamp(A, name):
    if not CFG.get("lst"): return
    i = LST[0]
    if i > 0:
        A(f"s_waitcnt lgkmcnt(0)\nv_writelane_b32 v{40 + (i-1)//64}, s{96 + 2*((i-1)&1)}, {(i-1)%64}")
    if name is not None:
        A(f"s_memrealtime s[{96+2*(i&1)}:{97+2*(i&1)}]")
        LSTN.append(name); LST[0] += 1
def lst_flush(A):
    if not CFG.get("lst"): return
    lstamp(A, None)
    A(f"s_waitcnt vmcnt(0)\ns_mov_b32 s{sT0}, {WS_STAMP + (1<<20)}")
    srd_off(A, sOUT, 18, sT0, 0x100000)
    A(f"s_mul_i32 s{sT0}, s2, 1024\nv_lshlrev_b32 v1, 2, v0")
    for k in range(3): A(f"buffer_store_dword v{40+k}, v1, s[{sOUT}:{sOUT+3}], s{sT0} offen offset:{256*k}")
    open("lst_names.txt", "w").write("\n".join(LSTN))

class Bars:
    def __init__(self, A, cyc=()): self.A = A; self.n = 0; self.cyc = list(cyc)
    def bar(self, name):
        assert BARS[self.n] == name, (BARS[self.n], name)
        self.A("s_barrier"); self.n += 1
        if CFG["stamps"] and name in self.cyc:
            k = 88 + 4 * self.cyc.index(name)
            self.A(f"s_memtime s[{k}:{k+1}]\ns_memrealtime s[{k+2}:{k+3}]")
    def upto(self, name, tag):
        n = BI[name] - self.n
        assert n >= 0
        if n <= 4:
            for _ in range(n): self.A("s_barrier")
        else:
            self.A(f"s_mov_b32 s{sCnt}, 0")
            self.A.label(tag)
            self.A(f"s_barrier\ns_add_u32 s{sCnt}, s{sCnt}, 1\ns_cmp_lt_u32 s{sCnt}, {n}\ns_cbranch_scc1 {tag}")
        self.n = BI[name]

def spin(A, tag, load, test):
    A(f"s_mov_b32 s{sT3}, 0")
    A.label(tag)
    A(load)
    A(f"s_add_u32 s{sT3}, s{sT3}, 1\ns_waitcnt vmcnt(0)\ns_cmp_ge_u32 s{sT3}, {CFG['spin']}\ns_cbranch_scc1 {tag}_done")
    test()
    A(f"s_cbranch_scc0 {tag}")
    A.label(f"{tag}_done")

RTAB = ["k0 a00", "b00 a01 b01", "a02 b02 a03", "b03 a10 b10", "k1 a11 b11", "a12 b12 a13", "b13 a20 b20", "a21 b21 a22",
        "k2 b22 a23", "b23 a30 b30", "a31 b31", "a32 b32", "k3 a33 b33", "", "", ""]
class Gemm4:
    def __init__(self, A, acc, FA, FB):
        self.A, self.acc, self.FA, self.FB = A, acc, FA, FB
        self.pend = None; self.first = True
    def mf(self, st, t):
        d = vr(self.acc + 16 * t, 16)
        return f"{MFMA} {d}, {vr(st['fa'] + 4*t, 4)}, {vr(st['fb'], 4)}, " + ("0" if st["c0"] else d)
    def body(self, bar, steps):
        A = self.A; n = len(steps)
        for k, st in enumerate(steps):
            st["fa"] = self.FA[k & 1]
            st["fb"] = self.FB[k & 1] if st["b"][0] == "lds" else st["b"][1]
            st["c0"] = self.first; self.first = False
        mfs = [(self.pend, t, None) for t in range(4)] + [(steps[k], t, k) for k in range(n - 1) for t in range(4)]
        barred = False
        for g, (st, t, k) in enumerate(mfs):
            if st is not None: A(self.mf(st, t))
            if g == 0: bar()
            if g + 1 < len(mfs) and mfs[g + 1][2] is not None and st is not None:
                k1, t1 = mfs[g + 1][2], mfs[g + 1][1]
                self.wait(k1, t1)
            if g == len(mfs) - 1: A.wait_ds()
            for tok in RTAB[g].split():
                kk = int(tok[1])
                if kk >= n: continue
                s2 = steps[kk]
                if tok[0] == "k":
                    if s2["b"][0] == "lds": A.ds(f"ds_read_b128 {vr(s2['fb'],4)}, v{s2['b'][1]} offset:{s2['b'][2]}", ("k", kk))
                else:
                    tt = int(tok[2]); p = 0 if tok[0] == "a" else 1
                    v = s2["a"][tt]
                    A.ds(f"ds_read_b64_tr_b16 {vr(s2['fa'] + 4*tt + 2*p, 2)}, v{v[0]} offset:{v[1+p]}", (tok[0], kk, tt))
            if st is None and g == 3: self.wait(0, 0)
        assert not A.lds_q
        self.pend = steps[-1]
    def wait(self, k, t):
        q = self.A.lds_q
        tags = [x for x in (("k", k), ("a", k, t), ("b", k, t)) if x in q]
        if tags: self.A.wait_ds(max(tags, key=q.index))
    def flush(self, fill=None, order=(0, 1, 2, 3)):
        for i, t in enumerate(order):
            self.A(self.mf(self.pend, t))
            if fill: fill(i)
        self.pend = None

class Gemm3:
    def __init__(self, A, acc, FA, FB):
        self.A, self.acc, self.FA, self.FB = A, acc, FA, FB
        self.pend = None; self.first = True
    def mf(self, st, t):
        d = vr(self.acc + 16 * t, 16)
        return f"{MFMA} {d}, {vr(st['fa'], 4)}, {vr(st['fb'] + 4*t, 4)}, " + ("0" if st["c0"] else d)
    def body(self, bar, steps):
        A = self.A; n = len(steps)
        for k, st in enumerate(steps):
            st["fa"] = self.FA[k & 1]; st["fb"] = self.FB[k & 1]; st["c0"] = self.first; self.first = False
        seq = [self.pend] + steps[:-1]
        for k in range(n):
            cur, nx = seq[k], steps[k]
            for t in range(3):
                if cur is not None:
                    if k > 0: A.wait_ds(("b", k - 1, t))
                    A(self.mf(cur, t))
                if k == 0 and t == 0: bar()
                if t == 0:
                    for p in range(2): A.ds(f"ds_read_b64_tr_b16 {vr(nx['fa'] + 2*p, 2)}, v{nx['a'][0]} offset:{nx['a'][1+p]}", ("a", k))
                A.ds(f"ds_read_b128 {vr(nx['fb'] + 4*t, 4)}, v{nx['b'][t][0]} offset:{nx['b'][t][1]}", ("b", k, t))
        A.wait_ds()
        self.pend = steps[-1]
    def flush(self, order):
        for t in order: self.A(self.mf(self.pend, t))
        self.pend = None

def kernel(A):
    L = NAME + "_kernel"
    A(f".globl {L}\n.p2align 8\n.type {L},@function")
    A.label(L)
    A(f"s_cmp_lt_u32 s2, 256\ns_cbranch_scc1 K_go\ns_endpgm")
    A.label("K_go")
    A("s_load_dwordx16 s[4:19], s[0:1], 0")
    if CFG.get("padto"): A("s_memrealtime s[98:99]")
    stamp(A, 0)
    A(f"""s_and_b32 s{sT0}, s2, 7
    s_lshr_b32 s{sKQ}, s{sT0}, 1
    s_and_b32 s{sT0}, s{sT0}, 1
    s_lshr_b32 s{sT1}, s2, 3
    s_and_b32 s{sCT}, s{sT1}, 3
    s_lshr_b32 s{sT1}, s{sT1}, 2
    s_lshl_b32 s{sB}, s{sT0}, 3
    s_add_u32 s{sB}, s{sB}, s{sT1}
    s_lshl_b32 s{sH0}, s{sKQ}, 3
    s_lshl_b32 s{sT0}, s{sCT}, 1
    s_add_u32 s{sH0}, s{sH0}, s{sT0}
    v_lshrrev_b32 v1, 6, v0
    v_and_b32 v0, 63, v0
    v_readfirstlane_b32 s{sW}, v1""")
    NT = " nt" if CFG["nt"] else ""
    A(f"s_cmp_eq_u32 s{sW}, 7\ns_cbranch_scc0 K_notld")

    vW, vX, vK, vV, vWo, vOo, vFa, vFd, vCa, vCd = 8, 12, 16, 20, 24, 34, 35, 36, 37, 38
    if CFG["prio"]: A("s_setprio 3")
    A(f"""v_lshrrev_b32 v1, 3, v0
    v_and_b32 v2, 7, v0
    v_lshrrev_b32 v3, 4, v0
    v_xor_b32 v4, v2, v3
    v_xor_b32 v5, 4, v4
    v_mul_u32_u24 v1, 1280, v1
    v_lshl_add_u32 v{vX}, v4, 4, v1
    v_lshl_add_u32 v{vX+1}, v5, 4, v1
    v_add_u32 v{vX+2}, {2*10240-2048}, v{vX}
    v_add_u32 v{vX+3}, {3*10240-3072}, v{vX+1}
    v_add_u32 v{vX+1}, {10240-1024}, v{vX+1}
    v_and_b32 v2, 15, v0
    v_lshlrev_b32 v4, 17, v3
    v_lshl_add_u32 v{vW}, v2, 4, v4""")
    for j in range(1, 4): A(f"v_add_u32 v{vW+j}, {j*(8192-1088)}, v{vW}")
    A(f"""s_and_b32 s{sT0}, s{sB}, 7
    s_lshr_b32 s{sT1}, s{sT0}, 2
    s_add_u32 s{sT0}, s{sT0}, s{sT1}
    s_mul_i32 s{sT1}, s{sCT}, 5
    s_lshr_b32 s{sT1}, s{sT1}, 1
    s_add_u32 s{sCX}, s{sT0}, s{sT1}
    s_sub_u32 s{sT0}, s{sCX}, 10
    s_cmp_ge_u32 s{sCX}, 10
    s_cselect_b32 s{sCX}, s{sT0}, s{sCX}""")
    if not CFG["rot"]: A(f"s_mov_b32 s{sCX}, 0")
    A(f"s_lshl_b32 s{sCW}, s{sCX}, 19\ns_lshl_b32 s{sCX}, s{sCX}, 7")
    A(f"s_mul_i32 s{sT0}, s{sB}, 122880\ns_lshl_b32 s{sT1}, s{sH0}, 8\ns_sub_u32 s{sT2}, 5242880, s{sT1}")
    A("s_waitcnt lgkmcnt(0)")
    lstamp(A, "karg")
    srd_off(A, sX, 4, sT0, 122880)
    srd_off(A, sWQ, 10, sT1, f"s{sT2}")
    def issue_X(it):
        base = S.ob["X", it][0]
        for a in range(3):
            A(f"s_mov_b32 m0, {base + a*4096}")
            A(f"s_add_u32 s{sT0}, s{sCX}, {a*40960}")
            for n in range(4):
                A.vm(f"buffer_load_dwordx4 v{vX+n}, s[{sX}:{sX+3}], s{sT0} offen offset:{n*1024} lds", ("X", it))
        A(f"s_add_u32 s{sCX}, s{sCX}, 128\ns_cmp_eq_u32 s{sCX}, 1280\ns_cselect_b32 s{sCX}, 0, s{sCX}")
    def issue_Wx(kind, it):
        base = S.ob[kind, it][0]
        r, c = (1, sCW2) if kind == "W2" else (0, sCW)
        if kind == "W" and it == 8: A(f"s_mov_b32 s{sCW2}, s{sCW}")
        for a in range(4):
            A(f"s_mov_b32 m0, {base + a*4352}")
            A(f"s_add_u32 s{sT0}, s{c}, {a*32768 + r*256}")
            for n in range(4):
                A.vm(f"buffer_load_dwordx4 v{vW+n}, s[{sWQ}:{sWQ+3}], s{sT0} offen offset:{n*1088} lds", (kind, it))
        A(f"s_add_u32 s{c}, s{c}, {64*8192}\ns_cmp_eq_u32 s{c}, 5242880\ns_cselect_b32 s{c}, 0, s{c}")
    def issue_K(t):
        if CFG.get("noload") and t > 4: return
        for a in range(2):
            A(f"s_mov_b32 m0, {KR(t) + a*4224}\ns_mov_b32 s{sT0}, {t*8192 + a*1024}")
            for n in range(4):
                A.vm(f"buffer_load_dwordx4 v{vK+n}, s[{sK}:{sK+3}], s{sT0} offen offset:{n*1056}{NT} lds", ("K", t))
    def issue_V(t):
        if CFG.get("noload") and t > 4: return
        for a in range(2):
            A(f"s_mov_b32 m0, {VR(t) + a*4352}\ns_mov_b32 s{sT0}, {t*8192 + a*1024}")
            for n in range(4):
                A.vm(f"buffer_load_dwordx4 v{vV+n}, s[{sV}:{sV+3}], s{sT0} offen offset:{n*1088}{NT} lds", ("V", t))
    def kv_setup():
        A(f"""v_lshrrev_b32 v1, 5, v0
        v_xor_b32 v1, v2, v1
        v_lshlrev_b32 v4, 11, v3
        v_add_u32 v4, 4096, v4
        v_lshl_add_u32 v{vK}, v1, 4, v4
        v_lshl_add_u32 v{vV}, v2, 4, v4""")
        for j in range(1, 4):
            A(f"v_subrev_u32 v{vK+j}, {j*800}, v{vK}\nv_subrev_u32 v{vV+j}, {j*832}, v{vV}")
        A(f"s_lshl_b32 s{sT3}, s{sB}, 5\ns_add_u32 s{sT3}, s{sT3}, s{sH0}\ns_lshl_b32 s{sT3}, s{sT3}, 17")
        for d, p in ((sK, 6), (sV, 8)):
            srd_off(A, d, p, sT3, 262144 + 4096)
            A(f"s_sub_u32 s{d}, s{d}, 4096\ns_subb_u32 s{d+1}, s{d+1}, 0")
    def late_setup():
        for n in range(10):
            A(f"v_add_u32 v1, {64*n}, v0\nv_mul_u32_u24 v2, 3277, v1\nv_lshrrev_b32 v2, 16, v2")
            A(f"v_mul_u32_u24 v3, 20, v2\nv_sub_u32 v3, v1, v3\nv_mul_u32_u24 v2, 1280, v2\nv_lshl_add_u32 v2, v3, 4, v2")
            A(f"v_subrev_u32 v{vWo+n}, {(n%4)*1024}, v2")
        A(f"v_lshlrev_b32 v{vOo}, 4, v0\nv_and_b32 v1, 15, v0\nv_lshlrev_b32 v{vFa}, 2, v1")
        A(f"s_mul_i32 s{sT0}, s{sKQ}, {1024*1280}\ns_mul_i32 s{sT1}, s{sCT}, 320\ns_add_u32 s{sT0}, s{sT0}, s{sT1}\ns_sub_u32 s{sT1}, 5242880, s{sT0}")
        srd_off(A, sWO, 12, sT0, f"s{sT1}")
        A(f"s_lshl_b32 s{sT2}, s{sB}, 5\ns_lshl_b32 s{sT3}, s{sKQ}, 3\ns_add_u32 s{sT2}, s{sT2}, s{sT3}\ns_mul_i32 s{sT2}, s{sT2}, 24576")
        srd_off(A, sWS, 18, sT2, 8 * 24576)
        A(f"s_lshl2_add_u32 s{sT0}, s{sB}, s{sKQ}\ns_lshl_b32 s{sT0}, s{sT0}, 8\ns_add_u32 s{sT0}, s{sT0}, {WS_F1}")
        srd_off(A, sFL, 18, sT0, 256)
        srd(A, sOUT, "s16", "s17", 256)
        A(f"s_lshl_b32 s{sT0}, s{sB}, 2\nv_mov_b32 v{vCa}, s{sT0}")
        A(f"s_lshl_b32 s{sT0}, s{sCT}, 2\ns_lshl_b32 s{sT0}, 15, s{sT0}\ns_andn2_b32 s{sMask}, 0x7777, s{sT0}")
        for k in range(4):
            if CFG["drot"]: A(f"s_add_u32 s{sT0}, s{sB}, {k}\ns_and_b32 s{sDt+k}, s{sT0}, 3")
            else: A(f"s_mov_b32 s{sDt+k}, {k}")
        A(f"s_lshl_b32 s{sPp}, s{sCT}, 3")
        if CFG["psh"]: A(f"s_and_b32 s{sT0}, s{sB}, 7\ns_lshl_b32 s{sT0}, s{sT0}, 1\ns_lshr_b32 s{sT0}, {sum((i % 3) << (2*i) for i in range(8))}, s{sT0}\ns_and_b32 s{sT0}, s{sT0}, 3")
        else: A(f"s_mov_b32 s{sT0}, 0")
        for g in range(1, 4):
            A(f"s_add_u32 s{sT1}, s{sT0}, s{sCT}\ns_add_u32 s{sT1}, s{sT1}, 1\ns_and_b32 s{sT1}, s{sT1}, 3\ns_lshl_b32 s{sPp+g}, s{sT1}, 3")
            A(f"s_add_u32 s{sT0}, s{sT0}, 1\ns_cmp_eq_u32 s{sT0}, 3\ns_cselect_b32 s{sT0}, 0, s{sT0}")
    def chunk_u(j, mul):
        A(f"s_add_u32 s{sT0}, s{sPp + ((j & 15) >> 2)}, s{sDt + (j & 3)}")
        if j >= 16: A(f"s_add_u32 s{sT0}, s{sT0}, 4")
        A(f"s_mul_i32 s{sT0}, s{sT0}, {mul}")
    def issue_wo(j):
        chunk_u(j, 40960)
        for n in range(10):
            if n % 4 == 0: A(f"s_mov_b32 m0, {S.wo[j] + n*1024}\ns_nop 0")
            A.vm(f"buffer_load_dwordx4 v{vWo+n}, s[{sWO}:{sWO+3}], s{sT0} offen offset:{(n%4)*1024} lds", ("wo", j))
    def issue_O(j):
        chunk_u(j, 6144)
        for n in range(6):
            if n % 4 == 0:
                A(f"s_mov_b32 m0, {S.oo[j] + n*1024}")
                A(f"s_add_u32 s{sT0}, s{sT0}, 4096" if n else "s_nop 0")
            A.vm(f"buffer_load_dwordx4 v{vOo}, s[{sWS}:{sWS+3}], s{sT0} offen offset:{(n%4)*1024} sc1 lds", ("O", j))
    ldc = f"buffer_load_dword v{vCd}, v{vCa}, s[{sOUT}:{sOUT+3}], 0 offen sc1"
    ldf = lambda r: f"buffer_load_dword v{vFd}, v{vFa}, s[{sFL}:{sFL+3}], 0 offen offset:{128*r} sc1"
    def tstc(): A(f"v_readfirstlane_b32 s{sT1}, v{vCd}\ns_cmp_ge_u32 s{sT1}, 16")
    def tstf(): A(f"v_cmp_eq_u32 vcc, 1, v{vFd}\ns_and_b32 s{sT2}, vcc_lo, s{sMask}\ns_cmp_eq_u32 s{sT2}, s{sMask}")
    def ctl(name):
        if name == "kvset": kv_setup()
        elif name == "late": late_setup()
        elif name == "cntI": A.vm(ldc, "cnt")
        elif name == "f1I": A.vm(ldf(0), "f1")
        elif name in ("cntC", "f1C"):
            c = name == "cntC"
            A.wait_vm("cnt" if c else "f1")
            (tstc if c else tstf)()
            A(f"s_cbranch_scc1 L_{name}_done")
            spin(A, f"L_{name}", ldc if c else ldf(0), tstc if c else tstf)
            lstamp(A, name)
        elif name == "spin2":
            lstamp(A, "spin")
            spin(A, "L_spin2", ldf(1), tstf)
            A.vm_q = []
            lstamp(A, "flags")
    for n in range(-1, len(BARS)):
        if n >= 0:
            need = [it for it in A.vm_q if it in S.ob and S.first(it) <= n]
            if need: A.wait_vm(need[-1])
            lstamp(A, f"arr {BARS[n]}")
            A("s_barrier")
            lstamp(A, f"dep {BARS[n]}")
        for it in S.iss[n]:
            k = it[0]
            if k == "ctl": ctl(it[1])
            elif k == "X": issue_X(it[1])
            elif k in ("W", "W2"): issue_Wx(k, it[1])
            elif k == "K": issue_K(it[1])
            elif k == "V": issue_V(it[1])
            elif k == "wo": issue_wo(it[1])
            elif k == "O": issue_O(it[1])
    assert not A.vm_q
    lst_flush(A)
    stamp_flush(A, 1, 0)
    A("s_endpgm")

    A.label("K_notld")
    vKa, vVa, vL, vTs, vSt, vD, vD2, vWa, vXa, vXb = 2, 3, 4, 6, 7, 8, 9, 10, 11, 252
    vT, vQ, vO, vS, vC, vKf, vVf = 16, 32, 64, 128, 160, 176, 208
    vP = [24, 240]
    FA = [208, 224]; FB = [240, 244]
    vHi, vN, vR, vCp, vG = 248, 249, 250, 251, 9
    A(f"s_and_b32 s{sI}, s{sW}, 3\ns_lshr_b32 s{sRr}, s{sW}, 2")
    A(f"""v_lshrrev_b32 v{vHi}, 5, v0
    v_and_b32 v{vN}, 31, v0
    v_bfe_u32 v{vG}, v0, 4, 1
    v_bfe_u32 v{vR}, v0, 2, 2
    v_and_b32 v1, 1, v0
    v_bfe_u32 v15, v0, 1, 1
    v_lshl_add_u32 v{vCp}, v1, 1, v15
    v_lshlrev_b32 v{vCp}, 3, v{vCp}
    v_lshl_add_u32 v{vCp}, v{vG}, 5, v{vCp}
    v_lshlrev_b32 v{vSt}, 4, v0""")
    A(f"s_cmp_eq_u32 s{sW}, 3\ns_cbranch_scc1 K_w3")
    A(f"""s_lshl_b32 s{sT0}, s{sI}, 12
    s_add_u32 s{sT1}, s{sT0}, {XB1}
    s_add_u32 s{sT0}, s{sT0}, {XB2}
    v_bfe_u32 v1, v0, 1, 3
    v_xor_b32 v1, v1, v{vHi}
    v_lshlrev_b32 v1, 4, v1
    v_lshl_add_u32 v1, v{vN}, 7, v1""")
    for ks in range(4):
        A(f"v_xor_b32 v15, {ks<<5}, v1\nv_add_u32 v{vXa+ks}, s{sT0}, v15\nv_add_u32 v{vXb+ks}, s{sT1}, v15")
    A(f"""v_lshl_add_u32 v1, v{vHi}, 3, v{vR}
    v_mul_u32_u24 v1, 1088, v1
    s_mov_b32 s{sT1}, {WSL['A']}
    v_add3_u32 v{vWa}, v1, v{vCp}, s{sT1}
    v_and_b32 v1, 7, v0
    v_mul_u32_u24 v1, 1056, v1
    v_bfe_u32 v15, v0, 3, 2
    v_lshl_add_u32 v1, v15, 8, v1
    v_xor_b32 v15, v{vHi}, v{vG}
    v_lshl_add_u32 v{vKa}, v15, 4, v1
    v_lshl_add_u32 v1, v{vHi}, 2, v{vR}
    v_mul_u32_u24 v1, 1088, v1
    s_mov_b32 s{sT1}, {VBASE}
    v_add3_u32 v{vVa}, v1, v{vCp}, s{sT1}""")
    A(f"s_mov_b32 s{sCs}, {f2u(CSC):#x}\ns_mov_b32 s{sCs+1}, {f2u(CSC):#x}\ns_mov_b32 s{sThr}, {f2u(THR):#x}")
    assert all(S.oo[j] == S.oo[0] + 16384 * j and S.oo[16 + j] == S.oo[16] + OSZ * j for j in range(4))
    A(f"""s_cmp_eq_u32 s{sRr}, 0
    s_mov_b32 s{sT1}, {OSZ}
    s_cselect_b32 s{sT1}, 16384, s{sT1}
    s_mov_b32 s{sT2}, {S.oo[16]}
    s_cselect_b32 s{sT2}, {S.oo[0]}, s{sT2}
    s_lshl_b32 s{sT0}, s{sI}, 11
    s_add_u32 s{sT2}, s{sT2}, s{sT0}""")
    for dt in range(4):
        if CFG["drot"]: A(f"s_sub_u32 s{sT0}, {dt}, s{sB}\ns_and_b32 s{sT0}, s{sT0}, 3")
        else: A(f"s_mov_b32 s{sT0}, {dt}")
        A(f"s_mul_i32 s{sT0}, s{sT0}, s{sT1}\ns_add_u32 s{sOw+dt}, s{sT0}, s{sT2}")
    A("s_waitcnt lgkmcnt(0)")
    A(f"s_lshl_b32 s{sT0}, s{sB}, 5\ns_add_u32 s{sT0}, s{sT0}, s{sH0}\ns_add_u32 s{sT0}, s{sT0}, s{sRr}")
    A(f"s_mul_i32 s{sT0}, s{sT0}, 24576\ns_lshl_b32 s{sT1}, s{sI}, 11\ns_add_u32 s{sT0}, s{sT0}, s{sT1}")
    srd_off(A, sWS, 18, sT0, 24576)
    A(f"""s_lshl2_add_u32 s{sT0}, s{sB}, s{sKQ}
    s_lshl1_add_u32 s{sT0}, s{sT0}, s{sRr}
    s_lshl_b32 s{sT0}, s{sT0}, 7
    s_lshl2_add_u32 s{sT1}, s{sCT}, s{sI}
    s_lshl2_add_u32 s{sT0}, s{sT1}, s{sT0}
    s_add_u32 s{sT0}, s{sT0}, {WS_F1}""")
    srd_off(A, sFL, 18, sT0, 4)
    A(f"s_cmp_eq_u32 s{sRr}, 0\ns_cbranch_scc0 K_bgrp")

    def xsrc(j, ks):
        a = S.ob["X", j][0]
        return ("lds", vXa + ks, a - XB2) if a >= XB2 else ("lds", vXb + ks, a - XB1)
    def wsrc(a, ks): return [(vWa, a - WSL["A"] + ks * 256 + 64 * t, a - WSL["A"] + 4352 + ks * 256 + 64 * t) for t in range(4)]

    def kread(t, ks): return f"ds_read_b128 {vr(vKf+4*ks,4)}, v{vKa} offset:{KR(t) + 32*ks}"
    def vread(t, m, dt, p): return f"ds_read_b64_tr_b16 {vr(vVf+16*m+4*dt+2*p,2)}, v{vVa} offset:{VR(t) - VBASE + (2*m+p)*256 + 64*dt}"
    def Sx(t): return vS + 16 * (t & 1)
    def qk(t, ks, c0): return f"{MFMA} {vr(Sx(t),16)}, {vr(vKf+4*ks,4)}, {vr(vQ+4*ks,4)}, " + (c0 if ks == 0 else vr(Sx(t),16))
    def pv(t, m, dt, z): return f"{MFMA} {vr(vO+16*dt,16)}, {vr(vVf+16*m+4*dt,4)}, {vr(vP[t&1]+4*m,4)}, " + ("0" if z and m == 0 else vr(vO+16*dt,16))
    def tok(t, x):
        c, i = x[0], int(x[1:] or 0)
        if c == "E": return f"v_exp_f32 v{vT+(i&7)}, v{Sx(t)+i}"
        if c == "A": return f"v_add_f32 v{vTs}, v{vT}, v{vT+1}" if i == 1 else f"v_add_f32 v{vTs}, v{vTs}, v{vT+(i&7)}"
        if c == "C": return f"v_cvt_pk_bf16_f32 v{vP[t&1]+i}, v{vT+((2*i)&7)}, v{vT+((2*i+1)&7)}"
        if c == "M": return f"v_cmp_lt_f32 vcc, s{sThr}, v{vTs}"
        if c == "L": return f"v_add_f32 v{vL}, v{vL}, v{vTs}"
        if c == "N": return tok(t + 1, "E0")
    PLAN = "E1 E2|A1 C0 E3|A2 E4 A3|C1 E5 A4|E6 A5 C2|E7 A6|E8 A7 C3|E9 A8|E10 A9 C4|E11 A10|E12 A11 C5|E13 A12|E14 A13 C6 E15|A14 A15 M C7".split("|")
    TOKS = " ".join(PLAN).split()
    rare_sites = [[], []]
    def rare(t):
        k = len(rare_sites[t & 1]); lb = f"R{t&1}_{k}"
        rare_sites[t & 1].append(lb)
        A(f"s_cbranch_vccnz {lb}"); A.label(lb + "_back")
    def cvq(ks):
        t, h = ks >> 1, ks & 1
        for j in range(4 * h, 4 * h + 4): A(f"v_pk_mul_f32 {vr(vO+16*t+2*j,2)}, {vr(vO+16*t+2*j,2)}, s[{sCs}:{sCs+1}]")
        for j in range(4 * h, 4 * h + 4): A(f"v_cvt_pk_bf16_f32 v{vQ+8*t+j}, v{vO+16*t+2*j}, v{vO+16*t+2*j+1}")
    def attention(B, t0, G):
        if G:
            def fill(i):
                if i == 0: B.bar(t0 - 2)
                for ks in ((0, 1, 2), (3, 4, 5), (6, 7), ())[i]: A.ds(kread(t0, ks), "K")
            G.flush(fill)
            A("s_nop 1")
            cvq(0)
            A.wait_ds()
            A("s_nop 0")
        else:
            B.bar(t0 - 2)
            for ks in range(8): A.ds(kread(t0, ks), "K")
            A.wait_ds()
            B.bar(t0 - 1)
        for ks in range(8):
            A(qk(t0, ks, "0"))
            if G and ks == 0: B.bar(t0 - 1)
            if ks >= 1: A.ds(kread(t0 + 1, ks - 1), "K")
            if G and ks < 7: cvq(ks + 1); A("s_nop 1")
        A("s_nop 3")
        A.ds(kread(t0 + 1, 7), "K")
        A("s_nop 6")
        s0 = Sx(t0)
        A(f"v_max3_f32 v{vD}, v{s0}, v{s0+1}, v{s0+2}\nv_max3_f32 v{vD2}, v{s0+3}, v{s0+4}, v{s0+5}")
        for j in range(5): A(f"v_max3_f32 v{(vD,vD2)[j&1]}, v{(vD,vD2)[j&1]}, v{s0+6+2*j}, v{s0+7+2*j}")
        A(f"""v_max_f32 v{vD}, v{vD}, v{vD2}
        v_mov_b32 v{vD2}, v{vD}
        s_nop 1
        v_permlane32_swap_b32 v{vD2}, v{vD}
        s_nop 1
        v_max_f32 v{vD}, v{vD}, v{vD2}
        v_sub_f32 v{vD}, 0, v{vD}
        v_mov_b32 v{vD2}, v{vD}""")
        for j in range(8): A(f"v_mov_b64 {vr(vC+2*j,2)}, {vr(vD,2)}")
        for j in range(8): A(f"v_pk_add_f32 {vr(s0+2*j,2)}, {vr(s0+2*j,2)}, {vr(vD,2)}")
        A(tok(t0, "E0"))
        A.wait_ds()
        tk = [x for x in TOKS if x != "M"]
        for ks in range(8):
            A(qk(t0 + 1, ks, vr(vC, 16)))
            if ks == 0: B.bar(t0)
            else: A.ds(kread(t0 + 2, ks - 1), "K")
            n = 4 if ks < 7 else len(tk)
            for x in tk[:n]: A(tok(t0, x))
            tk = tk[n:]
        A.ds(kread(t0 + 2, 7), "K")
        A(f"v_mov_b32 v{vL}, v{vTs}")
        A.wait_ds()
        B.bar(t0 + 1)
        A(tok(t0, "N"))
        for t in range(t0 + 1, t0 + 15):
            vq = [vread(t - 1, m, dt, p) for m in range(2) for dt in range(4) for p in range(2)]
            kq = [kread(t + 2, ks) for ks in range(8)] if t + 2 < t0 + 16 else []
            mf = [qk(t + 1, ks, vr(vC, 16)) for ks in range(8)] + [pv(t - 1, m, dt, t - 1 == t0) for m in range(2) for dt in range(4)]
            for g in range(16):
                A(mf[g])
                if g == 7: A.wait_ds("V0")
                if g == 11: A.wait_ds("V1")
                if g < 8:
                    for _ in range(2): A.ds(vq.pop(0), "V0" if g < 4 else "V1")
                elif g < 12 and kq:
                    for _ in range(2): A.ds(kq.pop(0), "K")
                if g < 14:
                    for x in PLAN[g].split(): A(tok(t, x))
                elif g == 14:
                    if A.lds_q: A.wait_ds()
                    B.bar(t + 1)
                else:
                    rare(t); A(tok(t, "L")); A(tok(t, "N"))
        t = t0 + 15
        vq = [vread(t - 1, m, dt, p) for m in range(2) for dt in range(4) for p in range(2)]
        tk = list(TOKS)
        for m in range(2):
            for _ in range(8): A.ds(vq.pop(0), f"V{m}")
            for x in tk[:6]: A(tok(t, x))
            tk = tk[6:]
        A.wait_ds("V0")
        for g in range(8):
            A(pv(t - 1, g >> 2, g & 3, False))
            if g == 3: A.wait_ds()
            n = 4 if g < 6 else len(tk)
            for x in tk[:n]: A(tok(t, x))
            tk = tk[n:]
        rare(t)
        A(tok(t, "L"))
        A(f"v_mov_b32 v{vD}, v{vL}\ns_nop 1\nv_permlane32_swap_b32 v{vD}, v{vL}\ns_nop 1")
        A(f"v_add_f32 v{vL}, v{vL}, v{vD}\nv_rcp_f32 v{vL}, v{vL}")
        B.bar(t + 1)
        for dt in range(4):
            for m in range(2):
                for p in range(2): A.ds(vread(t, m, dt, p), ("V", dt, m))
        A(f"v_mov_b32 v{vL+1}, v{vL}")
        for dt in range(4): A(f"v_add_u32 v{vT+dt}, s{sOw+dt}, v{vSt}")
        def fin(dt):
            for j in range(8): A(f"v_pk_mul_f32 {vr(vO+16*dt+2*j,2)}, {vr(vO+16*dt+2*j,2)}, {vr(vL,2)}")
            for j in range(8): A(f"v_cvt_pk_bf16_f32 v{vKf+8*dt+j}, v{vO+16*dt+2*j}, v{vO+16*dt+2*j+1}")
            A(f"s_mov_b32 s{sT0}, {dt*6144}")
            for m in range(2):
                if not CFG.get("nost"): A(f"buffer_store_dwordx4 {vr(vKf+8*dt+4*m,4)}, v{vSt}, s[{sWS}:{sWS+3}], s{sT0} offen offset:{m*1024} sc1")
            for m in range(2): A.ds(f"ds_write_b128 v{vT+dt}, {vr(vKf+8*dt+4*m,4)} offset:{m*1024}", "W")
        for dt in range(4):
            for m in range(2):
                A.wait_ds(("V", dt, m))
                A(pv(t, m, dt, False))
            if dt == 1: A("s_nop 3")
            if dt >= 1: fin(dt - 1)
        fin(3)
        A(f"v_mov_b32 v{vD}, 1")
        A.wait_ds()
    flag1 = f"buffer_store_dword v{vD}, v{vSt}, s[{sFL}:{sFL+3}], 0 offen sc1"

    BA = Bars(A, CFG['cycA'])
    G = Gemm4(A, vO, FA, FB)
    for j in range(10):
        G.body(lambda: BA.bar(f"Q{j}"), [dict(b=xsrc(j, ks), a=wsrc(S.ob["W", j][0], ks)) for ks in range(4)])
    attention(BA, 0, G)
    A("s_branch K_op0")

    A.label("K_bgrp")
    BB = Bars(A, CFG['cycB'])
    def xreg(it, ks): return (16 + 16 * it if it < 3 else 128 + 16 * (it - 3)) + 4 * ks
    for it in range(8):
        BB.bar(f"Q{it}")
        for ks in range(4):
            _, v, off = xsrc(it, ks)
            A(f"ds_read_b128 {vr(xreg(it,ks),4)}, v{v} offset:{off}")
        A("s_waitcnt lgkmcnt(0)")
    if CFG["prio"]: A("s_setprio 1")
    G = Gemm4(A, vO, FA, FB)
    for i in range(10):
        e = S.q2e[i]
        if BARS[BB.n] != e and G.pend:
            G.flush(lambda k: BB.bar(BARS[BB.n]) if k == 0 else None)
        BB.upto(e, f"B_i{i}")
        src = (lambda ks: xsrc(8 + i, ks)) if i < 2 else (lambda ks: ("reg", xreg(i - 2, ks)))
        G.body(lambda: BB.bar(e), [dict(b=src(ks), a=wsrc(S.w2a[i], ks)) for ks in range(4)])
    G.flush(lambda k: BB.bar(BARS[BB.n]) if k == 0 else None)
    if CFG["prio"]: A("s_setprio 0")
    A("s_nop 1")
    for ks in range(8): cvq(ks)
    BB.upto(14, "B_i10")
    attention(BB, 16, None)
    stamp(A, 0)
    while BB.n <= BI[CFG["BE"]]: BB.bar(BARS[BB.n])
    A(f"s_waitcnt vmcnt(0)\n{flag1}")
    if CFG["stamps"]:
        stamp(A, 1)
        A(f"s_cmp_eq_u32 s{sI}, 0\ns_cbranch_scc0 K_bend")
        stamp_flush(A, 2, 9)
        stamp_flush(A, 4, 20, 88)
        A.label("K_bend")
    A("s_endpgm")

    for par in range(2):
        for k, lb in enumerate(rare_sites[par]):
            A.label(lb); A(f"s_mov_b32 s{sId}, {k}\ns_branch RH{par}")
        A.label(f"RH{par}")
        Sc, Sn = Sx(par), Sx(par + 1)
        A(f"v_max3_f32 v{vD}, v{Sc}, v{Sc+1}, 0")
        for i in range(2, 16, 2): A(f"v_max3_f32 v{vD}, v{vD}, v{Sc+i}, v{Sc+i+1}")
        A(f"""v_mov_b32 v{vD2}, v{vD}
        s_nop 1
        v_permlane32_swap_b32 v{vD2}, v{vD}
        s_nop 1
        v_max_f32 v{vD}, v{vD}, v{vD2}
        v_sub_f32 v{vD2}, 0, v{vD}
        v_exp_f32 v{vD2}, v{vD2}
        s_nop 7
        s_nop 7""")
        for i in range(16): A(f"v_sub_f32 v{Sc+i}, v{Sc+i}, v{vD}")
        for i in range(16): A(f"v_sub_f32 v{vC+i}, v{vC+i}, v{vD}")
        for i in range(16): A(f"v_sub_f32 v{Sn+i}, v{Sn+i}, v{vD}")
        A(f"v_mul_f32 v{vL}, v{vD2}, v{vL}")
        for i in range(64): A(f"v_mul_f32 v{vO+i}, v{vD2}, v{vO+i}")
        A(tok(par, "E0"))
        for x in TOKS:
            if x != "M": A(tok(par, x)); A("s_nop 0")
        A("s_nop 1")
        for k, lb in enumerate(rare_sites[par][:-1]): A(f"s_cmp_eq_u32 s{sId}, {k}\ns_cbranch_scc1 {lb}_back")
        A(f"s_branch {rare_sites[par][-1]}_back")

    A.label("K_w3")
    A("s_waitcnt lgkmcnt(0)")
    srd(A, sFL, "s18", "s19", WS_F2 + 65536)
    srd(A, sOUT, "s16", "s17", 256)
    A(f"""s_lshl2_add_u32 s{sT0}, s{sB}, s{sCT}
    s_lshl_b32 s{sT0}, s{sT0}, 9
    s_lshl4_add_u32 s{sT0}, s{sKQ}, s{sT0}
    s_add_u32 s{sT0}, s{sT0}, {WS_F2}
    s_lshl2_add_u32 s{sT1}, s{sB}, s{sKQ}
    s_lshl_b32 s{sT1}, s{sT1}, 8
    s_lshl4_add_u32 s{sT1}, s{sCT}, s{sT1}
    s_add_u32 s{sT1}, s{sT1}, {WS_F1 - 512}
    v_mov_b32 v1, s{sT0}
    v_mov_b32 v2, s{sT1}
    v_cmp_gt_u32 vcc, 4, v0
    v_mov_b32 v12, 0
    v_mov_b32 v13, 0
    v_cndmask_b32 v1, v2, v1, vcc
    v_lshl_add_u32 v1, v0, 7, v1
    v_mov_b32 v14, 0
    v_mov_b32 v15, 0
    s_mov_b64 exec, 63
    buffer_store_dwordx4 v[12:15], v1, s[{sFL}:{sFL+3}], 0 offen sc1
    s_mov_b64 exec, 1
    s_lshl_b32 s{sT0}, s{sB}, 2
    v_mov_b32 v2, s{sT0}
    v_mov_b32 v3, 1
    s_waitcnt vmcnt(0)
    buffer_atomic_add v3, v2, s[{sOUT}:{sOUT+3}], 0 offen sc1
    s_mov_b64 exec, -1""")
    BW = Bars(A)

    vAcc, vRv = 64, 176
    vA, vB = 16, 32
    OB = [0, 57344, 114688]
    sOwn, sP2, sF2, sOo, sMk, sEx = 20, 24, 28, 32, 33, 34
    def bsel(a, span):
        k = max(i for i in range(3) if OB[i] <= a)
        assert a - OB[k] + span < 65536
        return k, a - OB[k]
    for role in (1, 0):
        Bx = BW if role else BA
        nT = 3 if role else 4
        if role == 0: A.label("K_op0")
        A(f"""v_lshl_add_u32 v1, v{vHi}, 3, v{vR}
        v_mul_u32_u24 v1, 320, v1
        v_add_u32 v1, v1, v{vCp}""")
        if role == 0:
            for s in range(4):
                A(f"s_add_u32 s{sOwn+s}, s{sKQ}, {s}\ns_and_b32 s{sOwn+s}, s{sOwn+s}, 3\ns_lshl_b32 s{sT0}, s{sOwn+s}, 6\nv_add_u32 v{vA+s}, s{sT0}, v1")
            A(f"s_lshl_b32 s{sT0}, s{sW}, 11\nv_add_u32 v{vB}, s{sT0}, v{vSt}")
            na, nb = 4, 1
        else:
            A(f"v_add_u32 v{vA}, 256, v1\ns_cmp_eq_u32 s{sKQ}, 3\ns_cselect_b32 s{sOwn}, 0, s{sKQ}")
            for s in range(3):
                if s: A(f"s_add_u32 s{sOwn+s}, s{sOwn+s-1}, 1\ns_cmp_eq_u32 s{sOwn+s}, 3\ns_cselect_b32 s{sOwn+s}, 0, s{sOwn+s}")
                A(f"s_lshl_b32 s{sT0}, s{sOwn+s}, 11\nv_add_u32 v{vB+s}, s{sT0}, v{vSt}")
            na, nb = 1, 3
        for k in (1, 2):
            for s in range(na): A(f"v_add_u32 v{vA+4*k+s}, {OB[k]}, v{vA+s}")
            for s in range(nb): A(f"v_add_u32 v{vB+4*k+s}, {OB[k]}, v{vB+s}")
        def hop_setup():
            A(f"""s_lshl2_add_u32 s{sT0}, s{sB}, s{sCT}
            s_lshl_b32 s{sT1}, s{sT0}, 18
            s_add_u32 s{sT1}, s{sT1}, {WS_P}
            s_lshl_b32 s{sT0}, s{sT0}, 9
            s_add_u32 s{sT0}, s{sT0}, {WS_F2}""")
            srd_off(A, sP2, 18, sT1, 4 * 65536)
            srd_off(A, sF2, 18, sT0, 512)
            srd(A, sOUT, "s14", "s15", 1966080)
            A(f"s_lshl2_add_u32 s{sT3}, s{sKQ}, s{sW}\nv_mov_b32 v13, s{sOwn}\nv_mov_b32 v14, 1")
            for s in range(1, nT): A(f"v_writelane_b32 v13, s{sOwn+s}, {s}")
            A(f"s_lshl_b32 s{sT0}, s{sT3}, 2\nv_lshlrev_b32 v13, 7, v13\nv_add_u32 v13, s{sT0}, v13")
            for s in range(nT): A(f"s_lshl_b32 s{sOwn+s}, s{sOwn+s}, 16\ns_lshl_b32 s{sT0}, s{sT3}, 12\ns_add_u32 s{sOwn+s}, s{sOwn+s}, s{sT0}")
            A(f"""v_and_b32 v1, 15, v0
            v_lshlrev_b32 v1, 2, v1
            s_lshl_b32 s{sT0}, s{sKQ}, 7
            v_add_u32 v11, s{sT0}, v1
            s_lshl_b32 s{sT1}, 0x1111, s{sW}
            s_lshl_b32 s{sT0}, s{sKQ}, 2
            s_lshl_b32 s{sT0}, 15, s{sT0}
            s_andn2_b32 s{sMk}, s{sT1}, s{sT0}
            v_mul_u32_u24 v12, 1280, v{vN}
            v_lshl_add_u32 v12, v{vHi}, 4, v12
            s_mul_i32 s{sOo}, s{sB}, 122880
            s_mul_i32 s{sT0}, s{sCT}, 320
            s_add_u32 s{sOo}, s{sOo}, s{sT0}""")
            if role == 0:
                A(f"s_mul_i32 s{sT0}, s{sW}, 40960\ns_add_u32 s{sOo}, s{sOo}, s{sT0}\ns_lshl_b32 s{sT0}, s{sKQ}, 6\ns_add_u32 s{sOo}, s{sOo}, s{sT0}")
                A(f"s_mov_b64 s[{sEx}:{sEx+1}], 14")
            else:
                A(f"s_mul_i32 s{sT0}, s{sKQ}, 40960\ns_add_u32 s{sOo}, s{sOo}, s{sT0}\ns_add_u32 s{sOo}, s{sOo}, 256")
                A(f"s_cmp_eq_u32 s{sKQ}, 3\ns_cselect_b64 s[{sEx}:{sEx+1}], 7, 6")
        if role == 1: hop_setup()
        G = Gemm3(A, vAcc, [128, 144], [132, 148]) if role else Gemm4(A, vAcc, [128, 144], [160, 164])
        def steps(j):
            ka, oa = bsel(S.wo[j], 20 * 320 + 1); kb, ob = bsel(S.oo[j], 1025)
            r = []
            for ks in range(2):
                o0, o1 = oa + 16 * ks * 320, oa + (16 * ks + 4) * 320
                if role: r.append(dict(a=(vA + 4 * ka, o0, o1), b=[(vB + 4 * kb + s, ob + ks * 1024) for s in range(3)]))
                else: r.append(dict(b=("lds", vB + 4 * kb, ob + ks * 1024), a=[(vA + 4 * ka + s, o0, o1) for s in range(4)]))
            return r
        if role: Bx.upto(17, "W3_i0")
        nidle = 0
        while Bx.n < len(BARS):
            e = BARS[Bx.n]
            if role == 0 and e == CFG["DR"] + 1:
                A(f"s_waitcnt vmcnt(0)\n{flag1}")
                hop_setup()
            if e in S.ope: G.body(lambda: Bx.bar(e), [st for j in S.ope[e] for st in steps(j)])
            else: Bx.bar(e)
        def send(s):
            for jj in range(4):
                A(f"buffer_store_dwordx4 {vr(vAcc+16*s+4*jj,4)}, v{vSt}, s[{sP2}:{sP2+3}], s{sOwn+s} offen offset:{jj*1024} sc1")
        if role == 0:
            G.flush(order=(1, 2, 3, 0))
            stamp(A, 0)
            for s in (1, 2, 3): send(s)
        else:
            G.flush((1, 2, 0))
            A("s_nop 3")
            send(1); send(2)
            A(f"s_cmp_eq_u32 s{sKQ}, 3\ns_cbranch_scc0 O_s0")
            A("s_nop 3")
            send(0)
            A.label("O_s0")
        stamp(A, 1)
        A(f"s_waitcnt vmcnt(0)\ns_mov_b64 exec, s[{sEx}:{sEx+1}]\nbuffer_store_dword v14, v13, s[{sF2}:{sF2+3}], 0 offen sc1\ns_mov_b64 exec, -1")
        stamp(A, 2)
        if role == 1: A(f"s_cmp_eq_u32 s{sKQ}, 3\ns_cbranch_scc0 O_rcv\ns_endpgm")
    A.label("O_rcv")
    spin(A, "O_poll", f"buffer_load_dword v14, v11, s[{sF2}:{sF2+3}], 0 offen sc1",
         lambda: A(f"v_cmp_eq_u32 vcc, 1, v14\ns_and_b32 s{sT2}, vcc_lo, s{sMk}\ns_cmp_eq_u32 s{sT2}, s{sMk}"))
    stamp(A, 3)
    A(f"s_lshl_b32 s{sT1}, s{sKQ}, 16\ns_lshl_b32 s{sT0}, s{sW}, 12\ns_add_u32 s{sT1}, s{sT1}, s{sT0}")
    for s in range(1, 4):
        A(f"s_add_u32 s{sT0}, s{sKQ}, {s}\ns_and_b32 s{sT0}, s{sT0}, 3\ns_lshl_b32 s{sT0}, s{sT0}, 14\ns_add_u32 s{sT0}, s{sT0}, s{sT1}")
        for jj in range(4):
            A.vm(f"buffer_load_dwordx4 {vr(vRv+16*(s-1)+4*jj,4)}, v{vSt}, s[{sP2}:{sP2+3}], s{sT0} offen offset:{jj*1024} sc1", s)
    for s in range(1, 4):
        A.wait_vm(s)
        for j in range(8): A(f"v_pk_add_f32 {vr(vAcc+2*j,2)}, {vr(vAcc+2*j,2)}, {vr(vRv+16*(s-1)+2*j,2)}")
    for j in range(8): A(f"v_cvt_pk_bf16_f32 v{24+j}, v{vAcc+2*j}, v{vAcc+2*j+1}")
    for m in range(2):
        A(f"buffer_store_dwordx4 {vr(24+4*m,4)}, v12, s[{sOUT}:{sOUT+3}], s{sOo} offen offset:{m*32}")
    if CFG.get("padto"):
        A.label("PAD")
        A(f"s_memrealtime s[96:97]\ns_waitcnt lgkmcnt(0)\ns_sub_u32 s96, s96, s98\ns_cmp_lt_u32 s96, {CFG['padto']}\ns_cbranch_scc1 PAD")
    if CFG["stamps"]:
        A("s_waitcnt vmcnt(0)")
        stamp(A, 4)
        A(f"s_cmp_eq_u32 s{sW}, 0\ns_cbranch_scc0 O_e2")
        stamp_flush(A, 5, 11)
        stamp_flush(A, 4, 16, 88)
        A.label("O_e2")
    A("s_endpgm")
    A(f""".section .rodata,"a"
.p2align 6
.amdhsa_kernel {L}
.amdhsa_next_free_vgpr 256
.amdhsa_next_free_sgpr 100
.amdhsa_accum_offset 256
.amdhsa_group_segment_fixed_size 0
.amdhsa_kernarg_size 64
.amdhsa_user_sgpr_count 2
.amdhsa_user_sgpr_kernarg_segment_ptr 1
.amdhsa_system_sgpr_workgroup_id_x 1
.end_amdhsa_kernel""")

def main():
    A = Asm()
    A("; @launch grid=(256,1,1) block=(512,1,1) lds=163840")
    A('.amdgcn_target "amdgcn-amd-amdhsa--gfx950"\n.text')
    kernel(A)
    t = A.text()
    probs = check_hazards(t)
    for p in probs[:40]: print(p)
    print("hazards:", len(probs))
    if CFG.get("show"): S.show()
    open(sys.argv[1], "w").write(t)
    assert all((p * 3277) >> 16 == p // 20 for p in range(640))
main()
```

```python
import sys, math, struct
sys.path.insert(0, "gen")
from asmlib import *
from sched3 import *

NAME = "standalone__gqa_block_cached__near_ridge"
CFG = dict(nt=1, stamps=0, lst=0, rot=1, prio=1, spin=200000, DR=18, cycA=('Q4','Q9'), cycB=(29,31), BE='Td', drot=1, psh=1,
           q0=0, F=20, qord=0, winQ=40, win=32)
for a in sys.argv[2:]:
    k, v = a.split("=", 1)
    CFG[k] = eval(v)
S = Sched(default_cfg(CFG))

MFMA = "v_mfma_f32_32x32x16_bf16"
CSC = math.log2(math.e) / math.sqrt(128.0)
def f2u(x): return struct.unpack("<I", struct.pack("<f", x))[0]
THR = 1024.0

WS_P = 16 << 20
WS_F1 = 32 << 20
WS_F2 = WS_F1 + 65536
WS_STAMP = 128 << 20
NST = 24

sW = 3
sX, sWQ, sK, sV, sWS, sWO, sOUT = 20, 24, 28, 32, 36, 40, 44
sB, sKQ, sCT, sH0 = 48, 49, 50, 51
sT0, sT1, sT2, sT3 = 52, 53, 54, 55
sI, sRr, sCnt, sId = 56, 57, 58, 59
sCX, sCW, sCW2, sMask = 56, 57, 58, 59
sDt, sPp = 60, 64
sOw = 60
sThr, sCs = 68, 70
sFL = 72
sSt = 76

def srd(A, d, lo, hi, n):
    A(f"s_mov_b32 s{d}, {lo}\ns_mov_b32 s{d+1}, {hi}\ns_mov_b32 s{d+2}, {n}\ns_mov_b32 s{d+3}, 0x20000")
def srd_off(A, d, p, soff, n):
    A(f"s_add_u32 s{d}, s{p}, s{soff}\ns_addc_u32 s{d+1}, s{p+1}, 0\ns_mov_b32 s{d+2}, {n}\ns_mov_b32 s{d+3}, 0x20000")

def stamp(A, i):
    if CFG["stamps"]: A(f"s_memrealtime s[{sSt+2*i}:{sSt+2*i+1}]")
def stamp_flush(A, n, slot0, sSt=sSt):
    if not CFG["stamps"]: return
    A("s_waitcnt lgkmcnt(0) vmcnt(0)")
    A(f"s_mov_b32 s{sT0}, {WS_STAMP}")
    srd_off(A, sOUT, 18, sT0, 0x100000)
    A(f"s_mul_i32 s{sT0}, s2, {NST*8}\ns_add_u32 s{sT0}, s{sT0}, {slot0*8}")
    A(f"s_mov_b64 exec, 1\nv_mov_b32 v1, s{sT0}")
    for i in range(n):
        A(f"v_mov_b32 v2, s{sSt+2*i}\nv_mov_b32 v3, s{sSt+2*i+1}")
        A(f"buffer_store_dwordx2 v[2:3], v1, s[{sOUT}:{sOUT+3}], 0 offen offset:{8*i}")
        A("s_nop 1")
    A("s_mov_b64 exec, -1")

LST = [0]
LSTN = []
def lstamp(A, name):
    if not CFG.get("lst"): return
    i = LST[0]
    if i > 0:
        A(f"s_waitcnt lgkmcnt(0)\nv_writelane_b32 v{40 + (i-1)//64}, s{96 + 2*((i-1)&1)}, {(i-1)%64}")
    if name is not None:
        A(f"s_memrealtime s[{96+2*(i&1)}:{97+2*(i&1)}]")
        LSTN.append(name); LST[0] += 1
def lst_flush(A):
    if not CFG.get("lst"): return
    lstamp(A, None)
    A(f"s_waitcnt vmcnt(0)\ns_mov_b32 s{sT0}, {WS_STAMP + (1<<20)}")
    srd_off(A, sOUT, 18, sT0, 0x100000)
    A(f"s_mul_i32 s{sT0}, s2, 1024\nv_lshlrev_b32 v1, 2, v0")
    for k in range(3): A(f"buffer_store_dword v{40+k}, v1, s[{sOUT}:{sOUT+3}], s{sT0} offen offset:{256*k}")
    open("lst_names.txt", "w").write("\n".join(LSTN))

class Bars:
    def __init__(self, A, cyc=()): self.A = A; self.n = 0; self.cyc = list(cyc)
    def bar(self, name):
        assert BARS[self.n] == name, (BARS[self.n], name)
        self.A("s_barrier"); self.n += 1
        if CFG.get("padto") and name == CFG.get("probe") and self.cyc: self.A("s_memrealtime s[90:91]")
        if CFG["stamps"] and name in self.cyc:
            k = 88 + 4 * self.cyc.index(name)
            self.A(f"s_memtime s[{k}:{k+1}]\ns_memrealtime s[{k+2}:{k+3}]")
    def upto(self, name, tag):
        n = BI[name] - self.n
        assert n >= 0
        if n <= 4:
            for _ in range(n): self.A("s_barrier")
        else:
            self.A(f"s_mov_b32 s{sCnt}, 0")
            self.A.label(tag)
            self.A(f"s_barrier\ns_add_u32 s{sCnt}, s{sCnt}, 1\ns_cmp_lt_u32 s{sCnt}, {n}\ns_cbranch_scc1 {tag}")
        self.n = BI[name]

def spin(A, tag, load, test):
    A(f"s_mov_b32 s{sT3}, 0")
    A.label(tag)
    A(load)
    A(f"s_add_u32 s{sT3}, s{sT3}, 1\ns_waitcnt vmcnt(0)\ns_cmp_ge_u32 s{sT3}, {CFG['spin']}\ns_cbranch_scc1 {tag}_done")
    test()
    A(f"s_cbranch_scc0 {tag}")
    A.label(f"{tag}_done")

RTAB = ["k0 a00", "b00 a01 b01", "a02 b02 a03", "b03 a10 b10", "k1 a11 b11", "a12 b12 a13", "b13 a20 b20", "a21 b21 a22",
        "k2 b22 a23", "b23 a30 b30", "a31 b31", "a32 b32", "k3 a33 b33", "", "", ""]
class Gemm4:
    def __init__(self, A, acc, FA, FB):
        self.A, self.acc, self.FA, self.FB = A, acc, FA, FB
        self.pend = None; self.first = True
    def mf(self, st, t):
        d = vr(self.acc + 16 * t, 16)
        return f"{MFMA} {d}, {vr(st['fa'] + 4*t, 4)}, {vr(st['fb'], 4)}, " + ("0" if st["c0"] else d)
    def body(self, bar, steps):
        A = self.A; n = len(steps)
        for k, st in enumerate(steps):
            st["fa"] = self.FA[k & 1]
            st["fb"] = self.FB[k & 1] if st["b"][0] == "lds" else st["b"][1]
            st["c0"] = self.first; self.first = False
        mfs = [(self.pend, t, None) for t in range(4)] + [(steps[k], t, k) for k in range(n - 1) for t in range(4)]
        barred = False
        for g, (st, t, k) in enumerate(mfs):
            if st is not None: A(self.mf(st, t))
            if g == 0: bar()
            if g + 1 < len(mfs) and mfs[g + 1][2] is not None and st is not None:
                k1, t1 = mfs[g + 1][2], mfs[g + 1][1]
                self.wait(k1, t1)
            if g == len(mfs) - 1: A.wait_ds()
            for tok in RTAB[g].split():
                kk = int(tok[1])
                if kk >= n: continue
                s2 = steps[kk]
                if tok[0] == "k":
                    if s2["b"][0] == "lds": A.ds(f"ds_read_b128 {vr(s2['fb'],4)}, v{s2['b'][1]} offset:{s2['b'][2]}", ("k", kk))
                else:
                    tt = int(tok[2]); p = 0 if tok[0] == "a" else 1
                    v = s2["a"][tt]
                    A.ds(f"ds_read_b64_tr_b16 {vr(s2['fa'] + 4*tt + 2*p, 2)}, v{v[0]} offset:{v[1+p]}", (tok[0], kk, tt))
            if st is None and g == 3: self.wait(0, 0)
        assert not A.lds_q
        self.pend = steps[-1]
    def wait(self, k, t):
        q = self.A.lds_q
        tags = [x for x in (("k", k), ("a", k, t), ("b", k, t)) if x in q]
        if tags: self.A.wait_ds(max(tags, key=q.index))
    def flush(self, fill=None, order=(0, 1, 2, 3)):
        for i, t in enumerate(order):
            self.A(self.mf(self.pend, t))
            if fill: fill(i)
        self.pend = None

class Gemm3:
    def __init__(self, A, acc, FA, FB):
        self.A, self.acc, self.FA, self.FB = A, acc, FA, FB
        self.pend = None; self.first = True
    def mf(self, st, t):
        d = vr(self.acc + 16 * t, 16)
        return f"{MFMA} {d}, {vr(st['fa'], 4)}, {vr(st['fb'] + 4*t, 4)}, " + ("0" if st["c0"] else d)
    def body(self, bar, steps):
        A = self.A; n = len(steps)
        for k, st in enumerate(steps):
            st["fa"] = self.FA[k & 1]; st["fb"] = self.FB[k & 1]; st["c0"] = self.first; self.first = False
        seq = [self.pend] + steps[:-1]
        for k in range(n):
            cur, nx = seq[k], steps[k]
            for t in range(3):
                if cur is not None:
                    if k > 0: A.wait_ds(("b", k - 1, t))
                    A(self.mf(cur, t))
                if k == 0 and t == 0: bar()
                if t == 0:
                    for p in range(2): A.ds(f"ds_read_b64_tr_b16 {vr(nx['fa'] + 2*p, 2)}, v{nx['a'][0]} offset:{nx['a'][1+p]}", ("a", k))
                A.ds(f"ds_read_b128 {vr(nx['fb'] + 4*t, 4)}, v{nx['b'][t][0]} offset:{nx['b'][t][1]}", ("b", k, t))
        A.wait_ds()
        self.pend = steps[-1]
    def flush(self, order):
        for t in order: self.A(self.mf(self.pend, t))
        self.pend = None

def kernel(A):
    L = NAME + "_kernel"
    A(f".globl {L}\n.p2align 8\n.type {L},@function")
    A.label(L)
    A(f"s_cmp_lt_u32 s2, 256\ns_cbranch_scc1 K_go\ns_endpgm")
    A.label("K_go")
    A("s_load_dwordx16 s[4:19], s[0:1], 0")
    if CFG.get("padto"): A("s_memrealtime s[98:99]")
    stamp(A, 0)
    A(f"""s_and_b32 s{sT0}, s2, 7
    s_lshr_b32 s{sKQ}, s{sT0}, 1
    s_and_b32 s{sT0}, s{sT0}, 1
    s_lshr_b32 s{sT1}, s2, 3
    s_and_b32 s{sCT}, s{sT1}, 3
    s_lshr_b32 s{sT1}, s{sT1}, 2
    s_lshl_b32 s{sB}, s{sT0}, 3
    s_add_u32 s{sB}, s{sB}, s{sT1}
    s_lshl_b32 s{sH0}, s{sKQ}, 3
    s_lshl_b32 s{sT0}, s{sCT}, 1
    s_add_u32 s{sH0}, s{sH0}, s{sT0}
    v_lshrrev_b32 v1, 6, v0
    v_and_b32 v0, 63, v0
    v_readfirstlane_b32 s{sW}, v1""")
    NT = " nt" if CFG["nt"] else ""
    A(f"s_cmp_eq_u32 s{sW}, 7\ns_cbranch_scc0 K_notld")

    vW, vX, vK, vV, vWo, vOo, vFa, vFd, vCa, vCd = 8, 12, 16, 20, 24, 34, 35, 36, 37, 38
    if CFG["prio"]: A("s_setprio 3")
    A(f"""v_lshrrev_b32 v1, 3, v0
    v_and_b32 v2, 7, v0
    v_lshrrev_b32 v3, 4, v0
    v_xor_b32 v4, v2, v3
    v_xor_b32 v5, 4, v4
    v_mul_u32_u24 v1, 1280, v1
    v_lshl_add_u32 v{vX}, v4, 4, v1
    v_lshl_add_u32 v{vX+1}, v5, 4, v1
    v_add_u32 v{vX+2}, {2*10240-2048}, v{vX}
    v_add_u32 v{vX+3}, {3*10240-3072}, v{vX+1}
    v_add_u32 v{vX+1}, {10240-1024}, v{vX+1}
    v_and_b32 v2, 15, v0
    v_lshlrev_b32 v4, 17, v3
    v_lshl_add_u32 v{vW}, v2, 4, v4""")
    for j in range(1, 4): A(f"v_add_u32 v{vW+j}, {j*(8192-1088)}, v{vW}")
    A(f"""s_and_b32 s{sT0}, s{sB}, 7
    s_lshr_b32 s{sT1}, s{sT0}, 2
    s_add_u32 s{sT0}, s{sT0}, s{sT1}
    s_mul_i32 s{sT1}, s{sCT}, 5
    s_lshr_b32 s{sT1}, s{sT1}, 1
    s_add_u32 s{sCX}, s{sT0}, s{sT1}
    s_sub_u32 s{sT0}, s{sCX}, 10
    s_cmp_ge_u32 s{sCX}, 10
    s_cselect_b32 s{sCX}, s{sT0}, s{sCX}""")
    if not CFG["rot"]: A(f"s_mov_b32 s{sCX}, 0")
    A(f"s_lshl_b32 s{sCW}, s{sCX}, 19\ns_lshl_b32 s{sCX}, s{sCX}, 7")
    A(f"s_mul_i32 s{sT0}, s{sB}, 122880\ns_lshl_b32 s{sT1}, s{sH0}, 8\ns_sub_u32 s{sT2}, 5242880, s{sT1}")
    A("s_waitcnt lgkmcnt(0)")
    lstamp(A, "karg")
    srd_off(A, sX, 4, sT0, 122880)
    srd_off(A, sWQ, 10, sT1, f"s{sT2}")
    def issue_X(it):
        base = S.ob["X", it][0]
        for a in range(3):
            A(f"s_mov_b32 m0, {base + a*4096}")
            A(f"s_add_u32 s{sT0}, s{sCX}, {a*40960}")
            for n in range(4):
                A.vm(f"buffer_load_dwordx4 v{vX+n}, s[{sX}:{sX+3}], s{sT0} offen offset:{n*1024} lds", ("X", it))
        A(f"s_add_u32 s{sCX}, s{sCX}, 128\ns_cmp_eq_u32 s{sCX}, 1280\ns_cselect_b32 s{sCX}, 0, s{sCX}")
    def issue_Wx(kind, it):
        base = S.ob[kind, it][0]
        r, c = (1, sCW2) if kind == "W2" else (0, sCW)
        if kind == "W" and it == 8: A(f"s_mov_b32 s{sCW2}, s{sCW}")
        for a in range(4):
            A(f"s_mov_b32 m0, {base + a*4352}")
            A(f"s_add_u32 s{sT0}, s{c}, {a*32768 + r*256}")
            for n in range(4):
                A.vm(f"buffer_load_dwordx4 v{vW+n}, s[{sWQ}:{sWQ+3}], s{sT0} offen offset:{n*1088} lds", (kind, it))
        A(f"s_add_u32 s{c}, s{c}, {64*8192}\ns_cmp_eq_u32 s{c}, 5242880\ns_cselect_b32 s{c}, 0, s{c}")
    def issue_K(t):
        if CFG.get("noload") and t > 4: return
        for a in range(2):
            A(f"s_mov_b32 m0, {KR(t) + a*4224}\ns_mov_b32 s{sT0}, {t*8192 + a*1024}")
            for n in range(4):
                A.vm(f"buffer_load_dwordx4 v{vK+n}, s[{sK}:{sK+3}], s{sT0} offen offset:{n*1056}{NT} lds", ("K", t))
    def issue_V(t):
        if CFG.get("noload") and t > 4: return
        for a in range(2):
            A(f"s_mov_b32 m0, {VR(t) + a*4352}\ns_mov_b32 s{sT0}, {t*8192 + a*1024}")
            for n in range(4):
                A.vm(f"buffer_load_dwordx4 v{vV+n}, s[{sV}:{sV+3}], s{sT0} offen offset:{n*1088}{NT} lds", ("V", t))
    def kv_setup():
        A(f"""v_lshrrev_b32 v1, 5, v0
        v_xor_b32 v1, v2, v1
        v_lshlrev_b32 v4, 11, v3
        v_add_u32 v4, 4096, v4
        v_lshl_add_u32 v{vK}, v1, 4, v4
        v_lshl_add_u32 v{vV}, v2, 4, v4""")
        for j in range(1, 4):
            A(f"v_subrev_u32 v{vK+j}, {j*800}, v{vK}\nv_subrev_u32 v{vV+j}, {j*832}, v{vV}")
        A(f"s_lshl_b32 s{sT3}, s{sB}, 5\ns_add_u32 s{sT3}, s{sT3}, s{sH0}\ns_lshl_b32 s{sT3}, s{sT3}, 17")
        for d, p in ((sK, 6), (sV, 8)):
            srd_off(A, d, p, sT3, 262144 + 4096)
            A(f"s_sub_u32 s{d}, s{d}, 4096\ns_subb_u32 s{d+1}, s{d+1}, 0")
    def late_setup():
        for n in range(10):
            A(f"v_add_u32 v1, {64*n}, v0\nv_mul_u32_u24 v2, 3277, v1\nv_lshrrev_b32 v2, 16, v2")
            A(f"v_mul_u32_u24 v3, 20, v2\nv_sub_u32 v3, v1, v3\nv_mul_u32_u24 v2, 1280, v2\nv_lshl_add_u32 v2, v3, 4, v2")
            A(f"v_subrev_u32 v{vWo+n}, {(n%4)*1024}, v2")
        A(f"v_lshlrev_b32 v{vOo}, 4, v0\nv_and_b32 v1, 15, v0\nv_lshlrev_b32 v{vFa}, 2, v1")
        A(f"s_mul_i32 s{sT0}, s{sKQ}, {1024*1280}\ns_mul_i32 s{sT1}, s{sCT}, 320\ns_add_u32 s{sT0}, s{sT0}, s{sT1}\ns_sub_u32 s{sT1}, 5242880, s{sT0}")
        srd_off(A, sWO, 12, sT0, f"s{sT1}")
        A(f"s_lshl_b32 s{sT2}, s{sB}, 5\ns_lshl_b32 s{sT3}, s{sKQ}, 3\ns_add_u32 s{sT2}, s{sT2}, s{sT3}\ns_mul_i32 s{sT2}, s{sT2}, 24576")
        srd_off(A, sWS, 18, sT2, 8 * 24576)
        A(f"s_lshl2_add_u32 s{sT0}, s{sB}, s{sKQ}\ns_lshl_b32 s{sT0}, s{sT0}, 8\ns_add_u32 s{sT0}, s{sT0}, {WS_F1}")
        srd_off(A, sFL, 18, sT0, 256)
        srd(A, sOUT, "s16", "s17", 256)
        A(f"s_lshl_b32 s{sT0}, s{sB}, 2\nv_mov_b32 v{vCa}, s{sT0}")
        A(f"s_lshl_b32 s{sT0}, s{sCT}, 2\ns_lshl_b32 s{sT0}, 15, s{sT0}\ns_andn2_b32 s{sMask}, 0x7777, s{sT0}")
        for k in range(4):
            if CFG["drot"]: A(f"s_add_u32 s{sT0}, s{sB}, {k}\ns_and_b32 s{sDt+k}, s{sT0}, 3")
            else: A(f"s_mov_b32 s{sDt+k}, {k}")
        A(f"s_lshl_b32 s{sPp}, s{sCT}, 3")
        if CFG["psh"]: A(f"s_and_b32 s{sT0}, s{sB}, 7\ns_lshl_b32 s{sT0}, s{sT0}, 1\ns_lshr_b32 s{sT0}, {sum((i % 3) << (2*i) for i in range(8))}, s{sT0}\ns_and_b32 s{sT0}, s{sT0}, 3")
        else: A(f"s_mov_b32 s{sT0}, 0")
        for g in range(1, 4):
            A(f"s_add_u32 s{sT1}, s{sT0}, s{sCT}\ns_add_u32 s{sT1}, s{sT1}, 1\ns_and_b32 s{sT1}, s{sT1}, 3\ns_lshl_b32 s{sPp+g}, s{sT1}, 3")
            A(f"s_add_u32 s{sT0}, s{sT0}, 1\ns_cmp_eq_u32 s{sT0}, 3\ns_cselect_b32 s{sT0}, 0, s{sT0}")
    def chunk_u(j, mul):
        A(f"s_add_u32 s{sT0}, s{sPp + ((j & 15) >> 2)}, s{sDt + (j & 3)}")
        if j >= 16: A(f"s_add_u32 s{sT0}, s{sT0}, 4")
        A(f"s_mul_i32 s{sT0}, s{sT0}, {mul}")
    def issue_wo(j):
        chunk_u(j, 40960)
        for n in range(10):
            if n % 4 == 0: A(f"s_mov_b32 m0, {S.wo[j] + n*1024}\ns_nop 0")
            A.vm(f"buffer_load_dwordx4 v{vWo+n}, s[{sWO}:{sWO+3}], s{sT0} offen offset:{(n%4)*1024} lds", ("wo", j))
    def issue_O(j):
        chunk_u(j, 6144)
        for n in range(6):
            if n % 4 == 0:
                A(f"s_mov_b32 m0, {S.oo[j] + n*1024}")
                A(f"s_add_u32 s{sT0}, s{sT0}, 4096" if n else "s_nop 0")
            A.vm(f"buffer_load_dwordx4 v{vOo}, s[{sWS}:{sWS+3}], s{sT0} offen offset:{(n%4)*1024} sc1 lds", ("O", j))
    ldc = f"buffer_load_dword v{vCd}, v{vCa}, s[{sOUT}:{sOUT+3}], 0 offen sc1"
    ldf = lambda r: f"buffer_load_dword v{vFd}, v{vFa}, s[{sFL}:{sFL+3}], 0 offen offset:{128*r} sc1"
    def tstc(): A(f"v_readfirstlane_b32 s{sT1}, v{vCd}\ns_cmp_ge_u32 s{sT1}, 16")
    def tstf(): A(f"v_cmp_eq_u32 vcc, 1, v{vFd}\ns_and_b32 s{sT2}, vcc_lo, s{sMask}\ns_cmp_eq_u32 s{sT2}, s{sMask}")
    def ctl(name):
        if name == "kvset": kv_setup()
        elif name == "late": late_setup()
        elif name == "cntI": A.vm(ldc, "cnt")
        elif name == "f1I": A.vm(ldf(0), "f1")
        elif name in ("cntC", "f1C"):
            c = name == "cntC"
            A.wait_vm("cnt" if c else "f1")
            (tstc if c else tstf)()
            A(f"s_cbranch_scc1 L_{name}_done")
            spin(A, f"L_{name}", ldc if c else ldf(0), tstc if c else tstf)
            lstamp(A, name)
        elif name == "spin2":
            lstamp(A, "spin")
            spin(A, "L_spin2", ldf(1), tstf)
            A.vm_q = []
            lstamp(A, "flags")
    for n in range(-1, len(BARS)):
        if n >= 0:
            need = [it for it in A.vm_q if it in S.ob and S.first(it) <= n]
            if need: A.wait_vm(need[-1])
            lstamp(A, f"arr {BARS[n]}")
            A("s_barrier")
            lstamp(A, f"dep {BARS[n]}")
        for it in S.iss[n]:
            k = it[0]
            if k == "ctl": ctl(it[1])
            elif k == "X": issue_X(it[1])
            elif k in ("W", "W2"): issue_Wx(k, it[1])
            elif k == "K": issue_K(it[1])
            elif k == "V": issue_V(it[1])
            elif k == "wo": issue_wo(it[1])
            elif k == "O": issue_O(it[1])
    assert not A.vm_q
    lst_flush(A)
    stamp_flush(A, 1, 0)
    A("s_endpgm")

    A.label("K_notld")
    vKa, vVa, vL, vTs, vSt, vD, vD2, vWa, vXa, vXb = 2, 3, 4, 6, 7, 8, 9, 10, 11, 252
    vT, vQ, vO, vS, vC, vKf, vVf = 16, 32, 64, 128, 160, 176, 208
    vP = [24, 240]
    FA = [208, 224]; FB = [240, 244]
    vHi, vN, vR, vCp, vG = 248, 249, 250, 251, 9
    A(f"s_and_b32 s{sI}, s{sW}, 3\ns_lshr_b32 s{sRr}, s{sW}, 2")
    A(f"""v_lshrrev_b32 v{vHi}, 5, v0
    v_and_b32 v{vN}, 31, v0
    v_bfe_u32 v{vG}, v0, 4, 1
    v_bfe_u32 v{vR}, v0, 2, 2
    v_and_b32 v1, 1, v0
    v_bfe_u32 v15, v0, 1, 1
    v_lshl_add_u32 v{vCp}, v1, 1, v15
    v_lshlrev_b32 v{vCp}, 3, v{vCp}
    v_lshl_add_u32 v{vCp}, v{vG}, 5, v{vCp}
    v_lshlrev_b32 v{vSt}, 4, v0""")
    A(f"s_cmp_eq_u32 s{sW}, 3\ns_cbranch_scc1 K_w3")
    A(f"""s_lshl_b32 s{sT0}, s{sI}, 12
    s_add_u32 s{sT1}, s{sT0}, {XB1}
    s_add_u32 s{sT0}, s{sT0}, {XB2}
    v_bfe_u32 v1, v0, 1, 3
    v_xor_b32 v1, v1, v{vHi}
    v_lshlrev_b32 v1, 4, v1
    v_lshl_add_u32 v1, v{vN}, 7, v1""")
    for ks in range(4):
        A(f"v_xor_b32 v15, {ks<<5}, v1\nv_add_u32 v{vXa+ks}, s{sT0}, v15\nv_add_u32 v{vXb+ks}, s{sT1}, v15")
    A(f"""v_lshl_add_u32 v1, v{vHi}, 3, v{vR}
    v_mul_u32_u24 v1, 1088, v1
    s_mov_b32 s{sT1}, {WSL['A']}
    v_add3_u32 v{vWa}, v1, v{vCp}, s{sT1}
    v_and_b32 v1, 7, v0
    v_mul_u32_u24 v1, 1056, v1
    v_bfe_u32 v15, v0, 3, 2
    v_lshl_add_u32 v1, v15, 8, v1
    v_xor_b32 v15, v{vHi}, v{vG}
    v_lshl_add_u32 v{vKa}, v15, 4, v1
    v_lshl_add_u32 v1, v{vHi}, 2, v{vR}
    v_mul_u32_u24 v1, 1088, v1
    s_mov_b32 s{sT1}, {VBASE}
    v_add3_u32 v{vVa}, v1, v{vCp}, s{sT1}""")
    A(f"s_mov_b32 s{sCs}, {f2u(CSC):#x}\ns_mov_b32 s{sCs+1}, {f2u(CSC):#x}\ns_mov_b32 s{sThr}, {f2u(THR):#x}")
    assert all(S.oo[j] == S.oo[0] + 16384 * j and S.oo[16 + j] == S.oo[16] + OSZ * j for j in range(4))
    A(f"""s_cmp_eq_u32 s{sRr}, 0
    s_mov_b32 s{sT1}, {OSZ}
    s_cselect_b32 s{sT1}, 16384, s{sT1}
    s_mov_b32 s{sT2}, {S.oo[16]}
    s_cselect_b32 s{sT2}, {S.oo[0]}, s{sT2}
    s_lshl_b32 s{sT0}, s{sI}, 11
    s_add_u32 s{sT2}, s{sT2}, s{sT0}""")
    for dt in range(4):
        if CFG["drot"]: A(f"s_sub_u32 s{sT0}, {dt}, s{sB}\ns_and_b32 s{sT0}, s{sT0}, 3")
        else: A(f"s_mov_b32 s{sT0}, {dt}")
        A(f"s_mul_i32 s{sT0}, s{sT0}, s{sT1}\ns_add_u32 s{sOw+dt}, s{sT0}, s{sT2}")
    A("s_waitcnt lgkmcnt(0)")
    A(f"s_lshl_b32 s{sT0}, s{sB}, 5\ns_add_u32 s{sT0}, s{sT0}, s{sH0}\ns_add_u32 s{sT0}, s{sT0}, s{sRr}")
    A(f"s_mul_i32 s{sT0}, s{sT0}, 24576\ns_lshl_b32 s{sT1}, s{sI}, 11\ns_add_u32 s{sT0}, s{sT0}, s{sT1}")
    srd_off(A, sWS, 18, sT0, 24576)
    A(f"""s_lshl2_add_u32 s{sT0}, s{sB}, s{sKQ}
    s_lshl1_add_u32 s{sT0}, s{sT0}, s{sRr}
    s_lshl_b32 s{sT0}, s{sT0}, 7
    s_lshl2_add_u32 s{sT1}, s{sCT}, s{sI}
    s_lshl2_add_u32 s{sT0}, s{sT1}, s{sT0}
    s_add_u32 s{sT0}, s{sT0}, {WS_F1}""")
    srd_off(A, sFL, 18, sT0, 4)
    A(f"s_cmp_eq_u32 s{sRr}, 0\ns_cbranch_scc0 K_bgrp")

    def xsrc(j, ks):
        a = S.ob["X", j][0]
        return ("lds", vXa + ks, a - XB2) if a >= XB2 else ("lds", vXb + ks, a - XB1)
    def wsrc(a, ks): return [(vWa, a - WSL["A"] + ks * 256 + 64 * t, a - WSL["A"] + 4352 + ks * 256 + 64 * t) for t in range(4)]

    def kread(t, ks): return f"ds_read_b128 {vr(vKf+4*ks,4)}, v{vKa} offset:{KR(t) + 32*ks}"
    def vread(t, m, dt, p): return f"ds_read_b64_tr_b16 {vr(vVf+16*m+4*dt+2*p,2)}, v{vVa} offset:{VR(t) - VBASE + (2*m+p)*256 + 64*dt}"
    def Sx(t): return vS + 16 * (t & 1)
    def qk(t, ks, c0): return f"{MFMA} {vr(Sx(t),16)}, {vr(vKf+4*ks,4)}, {vr(vQ+4*ks,4)}, " + (c0 if ks == 0 else vr(Sx(t),16))
    def pv(t, m, dt, z): return f"{MFMA} {vr(vO+16*dt,16)}, {vr(vVf+16*m+4*dt,4)}, {vr(vP[t&1]+4*m,4)}, " + ("0" if z and m == 0 else vr(vO+16*dt,16))
    def tok(t, x):
        c, i = x[0], int(x[1:] or 0)
        if c == "E": return f"v_exp_f32 v{vT+(i&7)}, v{Sx(t)+i}"
        if c == "A": return f"v_add_f32 v{vTs}, v{vT}, v{vT+1}" if i == 1 else f"v_add_f32 v{vTs}, v{vTs}, v{vT+(i&7)}"
        if c == "C": return f"v_cvt_pk_bf16_f32 v{vP[t&1]+i}, v{vT+((2*i)&7)}, v{vT+((2*i+1)&7)}"
        if c == "M": return f"v_cmp_lt_f32 vcc, s{sThr}, v{vTs}"
        if c == "L": return f"v_add_f32 v{vL}, v{vL}, v{vTs}"
        if c == "N": return tok(t + 1, "E0")
    PLAN = "E1 E2|A1 C0 E3|A2 E4 A3|C1 E5 A4|E6 A5 C2|E7 A6|E8 A7 C3|E9 A8|E10 A9 C4|E11 A10|E12 A11 C5|E13 A12|E14 A13 C6 E15|A14 A15 M C7".split("|")
    TOKS = " ".join(PLAN).split()
    rare_sites = [[], []]
    def rare(t):
        k = len(rare_sites[t & 1]); lb = f"R{t&1}_{k}"
        rare_sites[t & 1].append(lb)
        A(f"s_cbranch_vccnz {lb}"); A.label(lb + "_back")
    def cvq(ks):
        t, h = ks >> 1, ks & 1
        for j in range(4 * h, 4 * h + 4): A(f"v_pk_mul_f32 {vr(vO+16*t+2*j,2)}, {vr(vO+16*t+2*j,2)}, s[{sCs}:{sCs+1}]")
        for j in range(4 * h, 4 * h + 4): A(f"v_cvt_pk_bf16_f32 v{vQ+8*t+j}, v{vO+16*t+2*j}, v{vO+16*t+2*j+1}")
    def attention(B, t0, G):
        if G:
            def fill(i):
                if i == 0: B.bar(t0 - 2)
                for ks in ((0, 1, 2), (3, 4, 5), (6, 7), ())[i]: A.ds(kread(t0, ks), "K")
            G.flush(fill)
            A("s_nop 1")
            cvq(0)
            A.wait_ds()
            A("s_nop 0")
        else:
            B.bar(t0 - 2)
            for ks in range(8): A.ds(kread(t0, ks), "K")
            A.wait_ds()
            B.bar(t0 - 1)
        for ks in range(8):
            A(qk(t0, ks, "0"))
            if G and ks == 0: B.bar(t0 - 1)
            if ks >= 1: A.ds(kread(t0 + 1, ks - 1), "K")
            if G and ks < 7: cvq(ks + 1); A("s_nop 1")
        A("s_nop 3")
        A.ds(kread(t0 + 1, 7), "K")
        A("s_nop 6")
        s0 = Sx(t0)
        A(f"v_max3_f32 v{vD}, v{s0}, v{s0+1}, v{s0+2}\nv_max3_f32 v{vD2}, v{s0+3}, v{s0+4}, v{s0+5}")
        for j in range(5): A(f"v_max3_f32 v{(vD,vD2)[j&1]}, v{(vD,vD2)[j&1]}, v{s0+6+2*j}, v{s0+7+2*j}")
        A(f"""v_max_f32 v{vD}, v{vD}, v{vD2}
        v_mov_b32 v{vD2}, v{vD}
        s_nop 1
        v_permlane32_swap_b32 v{vD2}, v{vD}
        s_nop 1
        v_max_f32 v{vD}, v{vD}, v{vD2}
        v_sub_f32 v{vD}, 0, v{vD}
        v_mov_b32 v{vD2}, v{vD}""")
        for j in range(8): A(f"v_mov_b64 {vr(vC+2*j,2)}, {vr(vD,2)}")
        for j in range(8): A(f"v_pk_add_f32 {vr(s0+2*j,2)}, {vr(s0+2*j,2)}, {vr(vD,2)}")
        A(tok(t0, "E0"))
        A.wait_ds()
        tk = [x for x in TOKS if x != "M"]
        for ks in range(8):
            A(qk(t0 + 1, ks, vr(vC, 16)))
            if ks == 0: B.bar(t0)
            else: A.ds(kread(t0 + 2, ks - 1), "K")
            n = 4 if ks < 7 else len(tk)
            for x in tk[:n]: A(tok(t0, x))
            tk = tk[n:]
        A.ds(kread(t0 + 2, 7), "K")
        A(f"v_mov_b32 v{vL}, v{vTs}")
        A.wait_ds()
        B.bar(t0 + 1)
        A(tok(t0, "N"))
        for t in range(t0 + 1, t0 + 15):
            vq = [vread(t - 1, m, dt, p) for m in range(2) for dt in range(4) for p in range(2)]
            kq = [kread(t + 2, ks) for ks in range(8)] if t + 2 < t0 + 16 else []
            mf = [qk(t + 1, ks, vr(vC, 16)) for ks in range(8)] + [pv(t - 1, m, dt, t - 1 == t0) for m in range(2) for dt in range(4)]
            for g in range(16):
                A(mf[g])
                if g == 7: A.wait_ds("V0")
                if g == 11: A.wait_ds("V1")
                if g < 8:
                    for _ in range(2): A.ds(vq.pop(0), "V0" if g < 4 else "V1")
                elif g < 12 and kq:
                    for _ in range(2): A.ds(kq.pop(0), "K")
                if g < 14:
                    for x in PLAN[g].split(): A(tok(t, x))
                elif g == 14:
                    if A.lds_q: A.wait_ds()
                    B.bar(t + 1)
                else:
                    rare(t); A(tok(t, "L")); A(tok(t, "N"))
        t = t0 + 15
        vq = [vread(t - 1, m, dt, p) for m in range(2) for dt in range(4) for p in range(2)]
        tk = list(TOKS)
        for m in range(2):
            for _ in range(8): A.ds(vq.pop(0), f"V{m}")
            for x in tk[:6]: A(tok(t, x))
            tk = tk[6:]
        A.wait_ds("V0")
        for g in range(8):
            A(pv(t - 1, g >> 2, g & 3, False))
            if g == 3: A.wait_ds()
            n = 4 if g < 6 else len(tk)
            for x in tk[:n]: A(tok(t, x))
            tk = tk[n:]
        rare(t)
        A(tok(t, "L"))
        A(f"v_mov_b32 v{vD}, v{vL}\ns_nop 1\nv_permlane32_swap_b32 v{vD}, v{vL}\ns_nop 1")
        A(f"v_add_f32 v{vL}, v{vL}, v{vD}\nv_rcp_f32 v{vL}, v{vL}")
        B.bar(t + 1)
        for dt in range(4):
            for m in range(2):
                for p in range(2): A.ds(vread(t, m, dt, p), ("V", dt, m))
        A(f"v_mov_b32 v{vL+1}, v{vL}")
        for dt in range(4): A(f"v_add_u32 v{vT+dt}, s{sOw+dt}, v{vSt}")
        def fin(dt):
            for j in range(8): A(f"v_pk_mul_f32 {vr(vO+16*dt+2*j,2)}, {vr(vO+16*dt+2*j,2)}, {vr(vL,2)}")
            for j in range(8): A(f"v_cvt_pk_bf16_f32 v{vKf+8*dt+j}, v{vO+16*dt+2*j}, v{vO+16*dt+2*j+1}")
            A(f"s_mov_b32 s{sT0}, {dt*6144}")
            for m in range(2):
                if not CFG.get("nost"): A(f"buffer_store_dwordx4 {vr(vKf+8*dt+4*m,4)}, v{vSt}, s[{sWS}:{sWS+3}], s{sT0} offen offset:{m*1024} sc1")
            for m in range(2): A.ds(f"ds_write_b128 v{vT+dt}, {vr(vKf+8*dt+4*m,4)} offset:{m*1024}", "W")
        for dt in range(4):
            for m in range(2):
                A.wait_ds(("V", dt, m))
                A(pv(t, m, dt, False))
            if dt == 1: A("s_nop 3")
            if dt >= 1: fin(dt - 1)
        fin(3)
        A(f"v_mov_b32 v{vD}, 1")
        A.wait_ds()
    flag1 = f"buffer_store_dword v{vD}, v{vSt}, s[{sFL}:{sFL+3}], 0 offen sc1"

    BA = Bars(A, CFG['cycA'])
    G = Gemm4(A, vO, FA, FB)
    for j in range(10):
        G.body(lambda: BA.bar(f"Q{j}"), [dict(b=xsrc(j, ks), a=wsrc(S.ob["W", j][0], ks)) for ks in range(4)])
    attention(BA, 0, G)
    A("s_branch K_op0")

    A.label("K_bgrp")
    BB = Bars(A, CFG['cycB'])
    def xreg(it, ks): return (16 + 16 * it if it < 3 else 128 + 16 * (it - 3)) + 4 * ks
    for it in range(8):
        BB.bar(f"Q{it}")
        for ks in range(4):
            _, v, off = xsrc(it, ks)
            A(f"ds_read_b128 {vr(xreg(it,ks),4)}, v{v} offset:{off}")
        A("s_waitcnt lgkmcnt(0)")
    if CFG["prio"]: A("s_setprio 1")
    G = Gemm4(A, vO, FA, FB)
    for i in range(10):
        e = S.q2e[i]
        if BARS[BB.n] != e and G.pend:
            G.flush(lambda k: BB.bar(BARS[BB.n]) if k == 0 else None)
        BB.upto(e, f"B_i{i}")
        src = (lambda ks: xsrc(8 + i, ks)) if i < 2 else (lambda ks: ("reg", xreg(i - 2, ks)))
        G.body(lambda: BB.bar(e), [dict(b=src(ks), a=wsrc(S.w2a[i], ks)) for ks in range(4)])
    G.flush(lambda k: BB.bar(BARS[BB.n]) if k == 0 else None)
    if CFG["prio"]: A("s_setprio 0")
    A("s_nop 1")
    for ks in range(8): cvq(ks)
    BB.upto(14, "B_i10")
    attention(BB, 16, None)
    stamp(A, 0)
    while BB.n <= BI[CFG["BE"]]: BB.bar(BARS[BB.n])
    A(f"s_waitcnt vmcnt(0)\n{flag1}")
    if CFG["stamps"]:
        stamp(A, 1)
        A(f"s_cmp_eq_u32 s{sI}, 0\ns_cbranch_scc0 K_bend")
        stamp_flush(A, 2, 9)
        stamp_flush(A, 4, 20, 88)
        A.label("K_bend")
    A("s_endpgm")

    for par in range(2):
        for k, lb in enumerate(rare_sites[par]):
            A.label(lb); A(f"s_mov_b32 s{sId}, {k}\ns_branch RH{par}")
        A.label(f"RH{par}")
        Sc, Sn = Sx(par), Sx(par + 1)
        A(f"v_max3_f32 v{vD}, v{Sc}, v{Sc+1}, 0")
        for i in range(2, 16, 2): A(f"v_max3_f32 v{vD}, v{vD}, v{Sc+i}, v{Sc+i+1}")
        A(f"""v_mov_b32 v{vD2}, v{vD}
        s_nop 1
        v_permlane32_swap_b32 v{vD2}, v{vD}
        s_nop 1
        v_max_f32 v{vD}, v{vD}, v{vD2}
        v_sub_f32 v{vD2}, 0, v{vD}
        v_exp_f32 v{vD2}, v{vD2}
        s_nop 7
        s_nop 7""")
        for i in range(16): A(f"v_sub_f32 v{Sc+i}, v{Sc+i}, v{vD}")
        for i in range(16): A(f"v_sub_f32 v{vC+i}, v{vC+i}, v{vD}")
        for i in range(16): A(f"v_sub_f32 v{Sn+i}, v{Sn+i}, v{vD}")
        A(f"v_mul_f32 v{vL}, v{vD2}, v{vL}")
        for i in range(64): A(f"v_mul_f32 v{vO+i}, v{vD2}, v{vO+i}")
        A(tok(par, "E0"))
        for x in TOKS:
            if x != "M": A(tok(par, x)); A("s_nop 0")
        A("s_nop 1")
        for k, lb in enumerate(rare_sites[par][:-1]): A(f"s_cmp_eq_u32 s{sId}, {k}\ns_cbranch_scc1 {lb}_back")
        A(f"s_branch {rare_sites[par][-1]}_back")

    A.label("K_w3")
    A("s_waitcnt lgkmcnt(0)")
    srd(A, sFL, "s18", "s19", WS_F2 + 65536)
    srd(A, sOUT, "s16", "s17", 256)
    A(f"""s_lshl2_add_u32 s{sT0}, s{sB}, s{sCT}
    s_lshl_b32 s{sT0}, s{sT0}, 9
    s_lshl4_add_u32 s{sT0}, s{sKQ}, s{sT0}
    s_add_u32 s{sT0}, s{sT0}, {WS_F2}
    s_lshl2_add_u32 s{sT1}, s{sB}, s{sKQ}
    s_lshl_b32 s{sT1}, s{sT1}, 8
    s_lshl4_add_u32 s{sT1}, s{sCT}, s{sT1}
    s_add_u32 s{sT1}, s{sT1}, {WS_F1 - 512}
    v_mov_b32 v1, s{sT0}
    v_mov_b32 v2, s{sT1}
    v_cmp_gt_u32 vcc, 4, v0
    v_mov_b32 v12, 0
    v_mov_b32 v13, 0
    v_cndmask_b32 v1, v2, v1, vcc
    v_lshl_add_u32 v1, v0, 7, v1
    v_mov_b32 v14, 0
    v_mov_b32 v15, 0
    s_mov_b64 exec, 63
    buffer_store_dwordx4 v[12:15], v1, s[{sFL}:{sFL+3}], 0 offen sc1
    s_mov_b64 exec, 1
    s_lshl_b32 s{sT0}, s{sB}, 2
    v_mov_b32 v2, s{sT0}
    v_mov_b32 v3, 1
    s_waitcnt vmcnt(0)
    buffer_atomic_add v3, v2, s[{sOUT}:{sOUT+3}], 0 offen sc1
    s_mov_b64 exec, -1""")
    BW = Bars(A)

    vAcc, vRv = 64, 176
    vA, vB = 16, 32
    OB = [0, 57344, 114688]
    sOwn, sP2, sF2, sOo, sMk, sEx = 20, 24, 28, 32, 33, 34
    def bsel(a, span):
        k = max(i for i in range(3) if OB[i] <= a)
        assert a - OB[k] + span < 65536
        return k, a - OB[k]
    for role in (1, 0):
        Bx = BW if role else BA
        nT = 3 if role else 4
        if role == 0: A.label("K_op0")
        A(f"""v_lshl_add_u32 v1, v{vHi}, 3, v{vR}
        v_mul_u32_u24 v1, 320, v1
        v_add_u32 v1, v1, v{vCp}""")
        if role == 0:
            for s in range(4):
                A(f"s_add_u32 s{sOwn+s}, s{sKQ}, {s}\ns_and_b32 s{sOwn+s}, s{sOwn+s}, 3\ns_lshl_b32 s{sT0}, s{sOwn+s}, 6\nv_add_u32 v{vA+s}, s{sT0}, v1")
            A(f"s_lshl_b32 s{sT0}, s{sW}, 11\nv_add_u32 v{vB}, s{sT0}, v{vSt}")
            na, nb = 4, 1
        else:
            A(f"v_add_u32 v{vA}, 256, v1\ns_cmp_eq_u32 s{sKQ}, 3\ns_cselect_b32 s{sOwn}, 0, s{sKQ}")
            for s in range(3):
                if s: A(f"s_add_u32 s{sOwn+s}, s{sOwn+s-1}, 1\ns_cmp_eq_u32 s{sOwn+s}, 3\ns_cselect_b32 s{sOwn+s}, 0, s{sOwn+s}")
                A(f"s_lshl_b32 s{sT0}, s{sOwn+s}, 11\nv_add_u32 v{vB+s}, s{sT0}, v{vSt}")
            na, nb = 1, 3
        for k in (1, 2):
            for s in range(na): A(f"v_add_u32 v{vA+4*k+s}, {OB[k]}, v{vA+s}")
            for s in range(nb): A(f"v_add_u32 v{vB+4*k+s}, {OB[k]}, v{vB+s}")
        def hop_setup():
            A(f"""s_lshl2_add_u32 s{sT0}, s{sB}, s{sCT}
            s_lshl_b32 s{sT1}, s{sT0}, 18
            s_add_u32 s{sT1}, s{sT1}, {WS_P}
            s_lshl_b32 s{sT0}, s{sT0}, 9
            s_add_u32 s{sT0}, s{sT0}, {WS_F2}""")
            srd_off(A, sP2, 18, sT1, 4 * 65536)
            srd_off(A, sF2, 18, sT0, 512)
            srd(A, sOUT, "s14", "s15", 1966080)
            A(f"s_lshl2_add_u32 s{sT3}, s{sKQ}, s{sW}\nv_mov_b32 v13, s{sOwn}\nv_mov_b32 v14, 1")
            for s in range(1, nT): A(f"v_writelane_b32 v13, s{sOwn+s}, {s}")
            A(f"s_lshl_b32 s{sT0}, s{sT3}, 2\nv_lshlrev_b32 v13, 7, v13\nv_add_u32 v13, s{sT0}, v13")
            for s in range(nT): A(f"s_lshl_b32 s{sOwn+s}, s{sOwn+s}, 16\ns_lshl_b32 s{sT0}, s{sT3}, 12\ns_add_u32 s{sOwn+s}, s{sOwn+s}, s{sT0}")
            A(f"""v_and_b32 v1, 15, v0
            v_lshlrev_b32 v1, 2, v1
            s_lshl_b32 s{sT0}, s{sKQ}, 7
            v_add_u32 v11, s{sT0}, v1
            s_lshl_b32 s{sT1}, 0x1111, s{sW}
            s_lshl_b32 s{sT0}, s{sKQ}, 2
            s_lshl_b32 s{sT0}, 15, s{sT0}
            s_andn2_b32 s{sMk}, s{sT1}, s{sT0}
            v_mul_u32_u24 v12, 1280, v{vN}
            v_lshl_add_u32 v12, v{vHi}, 4, v12
            s_mul_i32 s{sOo}, s{sB}, 122880
            s_mul_i32 s{sT0}, s{sCT}, 320
            s_add_u32 s{sOo}, s{sOo}, s{sT0}""")
            if role == 0:
                A(f"s_mul_i32 s{sT0}, s{sW}, 40960\ns_add_u32 s{sOo}, s{sOo}, s{sT0}\ns_lshl_b32 s{sT0}, s{sKQ}, 6\ns_add_u32 s{sOo}, s{sOo}, s{sT0}")
                A(f"s_mov_b64 s[{sEx}:{sEx+1}], 14")
            else:
                A(f"s_mul_i32 s{sT0}, s{sKQ}, 40960\ns_add_u32 s{sOo}, s{sOo}, s{sT0}\ns_add_u32 s{sOo}, s{sOo}, 256")
                A(f"s_cmp_eq_u32 s{sKQ}, 3\ns_cselect_b64 s[{sEx}:{sEx+1}], 7, 6")
        if role == 1: hop_setup()
        G = Gemm3(A, vAcc, [128, 144], [132, 148]) if role else Gemm4(A, vAcc, [128, 144], [160, 164])
        def steps(j):
            ka, oa = bsel(S.wo[j], 20 * 320 + 1); kb, ob = bsel(S.oo[j], 1025)
            r = []
            for ks in range(2):
                o0, o1 = oa + 16 * ks * 320, oa + (16 * ks + 4) * 320
                if role: r.append(dict(a=(vA + 4 * ka, o0, o1), b=[(vB + 4 * kb + s, ob + ks * 1024) for s in range(3)]))
                else: r.append(dict(b=("lds", vB + 4 * kb, ob + ks * 1024), a=[(vA + 4 * ka + s, o0, o1) for s in range(4)]))
            return r
        if role: Bx.upto(17, "W3_i0")
        nidle = 0
        while Bx.n < len(BARS):
            e = BARS[Bx.n]
            if role == 0 and e == CFG["DR"] + 1:
                A(f"s_waitcnt vmcnt(0)\n{flag1}")
                hop_setup()
            if e in S.ope: G.body(lambda: Bx.bar(e), [st for j in S.ope[e] for st in steps(j)])
            else: Bx.bar(e)
        def send(s):
            for jj in range(4):
                A(f"buffer_store_dwordx4 {vr(vAcc+16*s+4*jj,4)}, v{vSt}, s[{sP2}:{sP2+3}], s{sOwn+s} offen offset:{jj*1024} sc1")
        if role == 0:
            G.flush(order=(1, 2, 3, 0))
            stamp(A, 0)
            for s in (1, 2, 3): send(s)
        else:
            G.flush((1, 2, 0))
            A("s_nop 3")
            send(1); send(2)
            A(f"s_cmp_eq_u32 s{sKQ}, 3\ns_cbranch_scc0 O_s0")
            A("s_nop 3")
            send(0)
            A.label("O_s0")
        stamp(A, 1)
        A(f"s_waitcnt vmcnt(0)\ns_mov_b64 exec, s[{sEx}:{sEx+1}]\nbuffer_store_dword v14, v13, s[{sF2}:{sF2+3}], 0 offen sc1\ns_mov_b64 exec, -1")
        stamp(A, 2)
        if role == 1: A(f"s_cmp_eq_u32 s{sKQ}, 3\ns_cbranch_scc0 O_rcv\ns_endpgm")
    A.label("O_rcv")
    spin(A, "O_poll", f"buffer_load_dword v14, v11, s[{sF2}:{sF2+3}], 0 offen sc1",
         lambda: A(f"v_cmp_eq_u32 vcc, 1, v14\ns_and_b32 s{sT2}, vcc_lo, s{sMk}\ns_cmp_eq_u32 s{sT2}, s{sMk}"))
    stamp(A, 3)
    A(f"s_lshl_b32 s{sT1}, s{sKQ}, 16\ns_lshl_b32 s{sT0}, s{sW}, 12\ns_add_u32 s{sT1}, s{sT1}, s{sT0}")
    for s in range(1, 4):
        A(f"s_add_u32 s{sT0}, s{sKQ}, {s}\ns_and_b32 s{sT0}, s{sT0}, 3\ns_lshl_b32 s{sT0}, s{sT0}, 14\ns_add_u32 s{sT0}, s{sT0}, s{sT1}")
        for jj in range(4):
            A.vm(f"buffer_load_dwordx4 {vr(vRv+16*(s-1)+4*jj,4)}, v{vSt}, s[{sP2}:{sP2+3}], s{sT0} offen offset:{jj*1024} sc1", s)
    for s in range(1, 4):
        A.wait_vm(s)
        for j in range(8): A(f"v_pk_add_f32 {vr(vAcc+2*j,2)}, {vr(vAcc+2*j,2)}, {vr(vRv+16*(s-1)+2*j,2)}")
    for j in range(8): A(f"v_cvt_pk_bf16_f32 v{24+j}, v{vAcc+2*j}, v{vAcc+2*j+1}")
    for m in range(2):
        A(f"buffer_store_dwordx4 {vr(24+4*m,4)}, v12, s[{sOUT}:{sOUT+3}], s{sOo} offen offset:{m*32}")
    if CFG.get("padto"):
        A(f"s_cmp_eq_u32 s{sW}, 3\ns_cbranch_scc1 PAD_done\ns_waitcnt lgkmcnt(0)")
        if CFG.get("probe") == "end": A("s_waitcnt vmcnt(0)\ns_memrealtime s[90:91]\ns_waitcnt lgkmcnt(0)")
        if CFG.get("probe") is not None: A(f"s_sub_u32 s90, s90, s98\ns_add_u32 s90, s90, {CFG['padto']}")
        else: A(f"s_mov_b32 s90, {CFG['padto']}")
        A.label("PAD")
        A(f"s_memrealtime s[96:97]\ns_waitcnt lgkmcnt(0)\ns_sub_u32 s96, s96, s98\ns_cmp_lt_u32 s96, s90\ns_cbranch_scc1 PAD")
        A.label("PAD_done")
    if CFG["stamps"]:
        A("s_waitcnt vmcnt(0)")
        stamp(A, 4)
        A(f"s_cmp_eq_u32 s{sW}, 0\ns_cbranch_scc0 O_e2")
        stamp_flush(A, 5, 11)
        stamp_flush(A, 4, 16, 88)
        A.label("O_e2")
    A("s_endpgm")
    A(f""".section .rodata,"a"
.p2align 6
.amdhsa_kernel {L}
.amdhsa_next_free_vgpr 256
.amdhsa_next_free_sgpr 100
.amdhsa_accum_offset 256
.amdhsa_group_segment_fixed_size 0
.amdhsa_kernarg_size 64
.amdhsa_user_sgpr_count 2
.amdhsa_user_sgpr_kernarg_segment_ptr 1
.amdhsa_system_sgpr_workgroup_id_x 1
.end_amdhsa_kernel""")

def main():
    A = Asm()
    A("; @launch grid=(256,1,1) block=(512,1,1) lds=163840")
    A('.amdgcn_target "amdgcn-amd-amdhsa--gfx950"\n.text')
    kernel(A)
    t = A.text()
    probs = check_hazards(t)
    for p in probs[:40]: print(p)
    print("hazards:", len(probs))
    if CFG.get("show"): S.show()
    open(sys.argv[1], "w").write(t)
    assert all((p * 3277) >> 16 == p // 20 for p in range(640))
main()
```

```python
import sys, math, struct
sys.path.insert(0, "gen")
from asmlib import *
from sched3 import *

NAME = "standalone__gqa_block_cached__near_ridge"
CFG = dict(nt=1, stamps=0, lst=0, rot=1, prio=1, spin=200000, DR=18, cycA=('Q4','Q9'), cycB=(29,31), BE='Td', drot=1, psh=1,
           q0=0, F=20, qord=0, winQ=40, win=32)
for a in sys.argv[2:]:
    k, v = a.split("=", 1)
    CFG[k] = eval(v)
S = Sched(default_cfg(CFG))

MFMA = "v_mfma_f32_32x32x16_bf16"
CSC = math.log2(math.e) / math.sqrt(128.0)
def f2u(x): return struct.unpack("<I", struct.pack("<f", x))[0]
THR = 1024.0

WS_P = 16 << 20
WS_F1 = 32 << 20
WS_F2 = WS_F1 + 65536
WS_STAMP = 128 << 20
NST = 24

sW = 3
sX, sWQ, sK, sV, sWS, sWO, sOUT = 20, 24, 28, 32, 36, 40, 44
sB, sKQ, sCT, sH0 = 48, 49, 50, 51
sT0, sT1, sT2, sT3 = 52, 53, 54, 55
sI, sRr, sCnt, sId = 56, 57, 58, 59
sCX, sCW, sCW2, sMask = 56, 57, 58, 59
sDt, sPp = 60, 64
sOw = 60
sThr, sCs = 68, 70
sFL = 72
sSt = 76

def srd(A, d, lo, hi, n):
    A(f"s_mov_b32 s{d}, {lo}\ns_mov_b32 s{d+1}, {hi}\ns_mov_b32 s{d+2}, {n}\ns_mov_b32 s{d+3}, 0x20000")
def srd_off(A, d, p, soff, n):
    A(f"s_add_u32 s{d}, s{p}, s{soff}\ns_addc_u32 s{d+1}, s{p+1}, 0\ns_mov_b32 s{d+2}, {n}\ns_mov_b32 s{d+3}, 0x20000")

def stamp(A, i):
    if CFG["stamps"]: A(f"s_memrealtime s[{sSt+2*i}:{sSt+2*i+1}]")
def stamp_flush(A, n, slot0, sSt=sSt):
    if not CFG["stamps"]: return
    A("s_waitcnt lgkmcnt(0) vmcnt(0)")
    A(f"s_mov_b32 s{sT0}, {WS_STAMP}")
    srd_off(A, sOUT, 18, sT0, 0x100000)
    A(f"s_mul_i32 s{sT0}, s2, {NST*8}\ns_add_u32 s{sT0}, s{sT0}, {slot0*8}")
    A(f"s_mov_b64 exec, 1\nv_mov_b32 v1, s{sT0}")
    for i in range(n):
        A(f"v_mov_b32 v2, s{sSt+2*i}\nv_mov_b32 v3, s{sSt+2*i+1}")
        A(f"buffer_store_dwordx2 v[2:3], v1, s[{sOUT}:{sOUT+3}], 0 offen offset:{8*i}")
        A("s_nop 1")
    A("s_mov_b64 exec, -1")

def probe(A, name):
    if CFG.get("padto") and CFG.get("probe") == name: A("s_memrealtime s[90:91]")

LST = [0]
LSTN = []
def lstamp(A, name):
    if not CFG.get("lst"): return
    i = LST[0]
    if i > 0:
        A(f"s_waitcnt lgkmcnt(0)\nv_writelane_b32 v{40 + (i-1)//64}, s{96 + 2*((i-1)&1)}, {(i-1)%64}")
    if name is not None:
        A(f"s_memrealtime s[{96+2*(i&1)}:{97+2*(i&1)}]")
        LSTN.append(name); LST[0] += 1
def lst_flush(A):
    if not CFG.get("lst"): return
    lstamp(A, None)
    A(f"s_waitcnt vmcnt(0)\ns_mov_b32 s{sT0}, {WS_STAMP + (1<<20)}")
    srd_off(A, sOUT, 18, sT0, 0x100000)
    A(f"s_mul_i32 s{sT0}, s2, 1024\nv_lshlrev_b32 v1, 2, v0")
    for k in range(3): A(f"buffer_store_dword v{40+k}, v1, s[{sOUT}:{sOUT+3}], s{sT0} offen offset:{256*k}")
    open("lst_names.txt", "w").write("\n".join(LSTN))

class Bars:
    def __init__(self, A, cyc=()): self.A = A; self.n = 0; self.cyc = list(cyc)
    def bar(self, name):
        assert BARS[self.n] == name, (BARS[self.n], name)
        self.A("s_barrier"); self.n += 1
        if CFG.get("padto") and name == CFG.get("probe") and self.cyc: self.A("s_memrealtime s[90:91]")
        if CFG["stamps"] and name in self.cyc:
            k = 88 + 4 * self.cyc.index(name)
            self.A(f"s_memtime s[{k}:{k+1}]\ns_memrealtime s[{k+2}:{k+3}]")
    def upto(self, name, tag):
        n = BI[name] - self.n
        assert n >= 0
        if n <= 4:
            for _ in range(n): self.A("s_barrier")
        else:
            self.A(f"s_mov_b32 s{sCnt}, 0")
            self.A.label(tag)
            self.A(f"s_barrier\ns_add_u32 s{sCnt}, s{sCnt}, 1\ns_cmp_lt_u32 s{sCnt}, {n}\ns_cbranch_scc1 {tag}")
        self.n = BI[name]

def spin(A, tag, load, test):
    A(f"s_mov_b32 s{sT3}, 0")
    A.label(tag)
    A(load)
    A(f"s_add_u32 s{sT3}, s{sT3}, 1\ns_waitcnt vmcnt(0)\ns_cmp_ge_u32 s{sT3}, {CFG['spin']}\ns_cbranch_scc1 {tag}_done")
    test()
    A(f"s_cbranch_scc0 {tag}")
    A.label(f"{tag}_done")

RTAB = ["k0 a00", "b00 a01 b01", "a02 b02 a03", "b03 a10 b10", "k1 a11 b11", "a12 b12 a13", "b13 a20 b20", "a21 b21 a22",
        "k2 b22 a23", "b23 a30 b30", "a31 b31", "a32 b32", "k3 a33 b33", "", "", ""]
class Gemm4:
    def __init__(self, A, acc, FA, FB):
        self.A, self.acc, self.FA, self.FB = A, acc, FA, FB
        self.pend = None; self.first = True
    def mf(self, st, t):
        d = vr(self.acc + 16 * t, 16)
        return f"{MFMA} {d}, {vr(st['fa'] + 4*t, 4)}, {vr(st['fb'], 4)}, " + ("0" if st["c0"] else d)
    def body(self, bar, steps):
        A = self.A; n = len(steps)
        for k, st in enumerate(steps):
            st["fa"] = self.FA[k & 1]
            st["fb"] = self.FB[k & 1] if st["b"][0] == "lds" else st["b"][1]
            st["c0"] = self.first; self.first = False
        mfs = [(self.pend, t, None) for t in range(4)] + [(steps[k], t, k) for k in range(n - 1) for t in range(4)]
        barred = False
        for g, (st, t, k) in enumerate(mfs):
            if st is not None: A(self.mf(st, t))
            if g == 0: bar()
            if g + 1 < len(mfs) and mfs[g + 1][2] is not None and st is not None:
                k1, t1 = mfs[g + 1][2], mfs[g + 1][1]
                self.wait(k1, t1)
            if g == len(mfs) - 1: A.wait_ds()
            for tok in RTAB[g].split():
                kk = int(tok[1])
                if kk >= n: continue
                s2 = steps[kk]
                if tok[0] == "k":
                    if s2["b"][0] == "lds": A.ds(f"ds_read_b128 {vr(s2['fb'],4)}, v{s2['b'][1]} offset:{s2['b'][2]}", ("k", kk))
                else:
                    tt = int(tok[2]); p = 0 if tok[0] == "a" else 1
                    v = s2["a"][tt]
                    A.ds(f"ds_read_b64_tr_b16 {vr(s2['fa'] + 4*tt + 2*p, 2)}, v{v[0]} offset:{v[1+p]}", (tok[0], kk, tt))
            if st is None and g == 3: self.wait(0, 0)
        assert not A.lds_q
        self.pend = steps[-1]
    def wait(self, k, t):
        q = self.A.lds_q
        tags = [x for x in (("k", k), ("a", k, t), ("b", k, t)) if x in q]
        if tags: self.A.wait_ds(max(tags, key=q.index))
    def flush(self, fill=None, order=(0, 1, 2, 3)):
        for i, t in enumerate(order):
            self.A(self.mf(self.pend, t))
            if fill: fill(i)
        self.pend = None

class Gemm3:
    def __init__(self, A, acc, FA, FB):
        self.A, self.acc, self.FA, self.FB = A, acc, FA, FB
        self.pend = None; self.first = True
    def mf(self, st, t):
        d = vr(self.acc + 16 * t, 16)
        return f"{MFMA} {d}, {vr(st['fa'], 4)}, {vr(st['fb'] + 4*t, 4)}, " + ("0" if st["c0"] else d)
    def body(self, bar, steps):
        A = self.A; n = len(steps)
        for k, st in enumerate(steps):
            st["fa"] = self.FA[k & 1]; st["fb"] = self.FB[k & 1]; st["c0"] = self.first; self.first = False
        seq = [self.pend] + steps[:-1]
        for k in range(n):
            cur, nx = seq[k], steps[k]
            for t in range(3):
                if cur is not None:
                    if k > 0: A.wait_ds(("b", k - 1, t))
                    A(self.mf(cur, t))
                if k == 0 and t == 0: bar()
                if t == 0:
                    for p in range(2): A.ds(f"ds_read_b64_tr_b16 {vr(nx['fa'] + 2*p, 2)}, v{nx['a'][0]} offset:{nx['a'][1+p]}", ("a", k))
                A.ds(f"ds_read_b128 {vr(nx['fb'] + 4*t, 4)}, v{nx['b'][t][0]} offset:{nx['b'][t][1]}", ("b", k, t))
        A.wait_ds()
        self.pend = steps[-1]
    def flush(self, order):
        for t in order: self.A(self.mf(self.pend, t))
        self.pend = None

def kernel(A):
    L = NAME + "_kernel"
    A(f".globl {L}\n.p2align 8\n.type {L},@function")
    A.label(L)
    A(f"s_cmp_lt_u32 s2, 256\ns_cbranch_scc1 K_go\ns_endpgm")
    A.label("K_go")
    A("s_load_dwordx16 s[4:19], s[0:1], 0")
    if CFG.get("padto"): A("s_memrealtime s[98:99]")
    stamp(A, 0)
    A(f"""s_and_b32 s{sT0}, s2, 7
    s_lshr_b32 s{sKQ}, s{sT0}, 1
    s_and_b32 s{sT0}, s{sT0}, 1
    s_lshr_b32 s{sT1}, s2, 3
    s_and_b32 s{sCT}, s{sT1}, 3
    s_lshr_b32 s{sT1}, s{sT1}, 2
    s_lshl_b32 s{sB}, s{sT0}, 3
    s_add_u32 s{sB}, s{sB}, s{sT1}
    s_lshl_b32 s{sH0}, s{sKQ}, 3
    s_lshl_b32 s{sT0}, s{sCT}, 1
    s_add_u32 s{sH0}, s{sH0}, s{sT0}
    v_lshrrev_b32 v1, 6, v0
    v_and_b32 v0, 63, v0
    v_readfirstlane_b32 s{sW}, v1""")
    NT = " nt" if CFG["nt"] else ""
    A(f"s_cmp_eq_u32 s{sW}, 7\ns_cbranch_scc0 K_notld")

    vW, vX, vK, vV, vWo, vOo, vFa, vFd, vCa, vCd = 8, 12, 16, 20, 24, 34, 35, 36, 37, 38
    if CFG["prio"]: A("s_setprio 3")
    A(f"""v_lshrrev_b32 v1, 3, v0
    v_and_b32 v2, 7, v0
    v_lshrrev_b32 v3, 4, v0
    v_xor_b32 v4, v2, v3
    v_xor_b32 v5, 4, v4
    v_mul_u32_u24 v1, 1280, v1
    v_lshl_add_u32 v{vX}, v4, 4, v1
    v_lshl_add_u32 v{vX+1}, v5, 4, v1
    v_add_u32 v{vX+2}, {2*10240-2048}, v{vX}
    v_add_u32 v{vX+3}, {3*10240-3072}, v{vX+1}
    v_add_u32 v{vX+1}, {10240-1024}, v{vX+1}
    v_and_b32 v2, 15, v0
    v_lshlrev_b32 v4, 17, v3
    v_lshl_add_u32 v{vW}, v2, 4, v4""")
    for j in range(1, 4): A(f"v_add_u32 v{vW+j}, {j*(8192-1088)}, v{vW}")
    A(f"""s_and_b32 s{sT0}, s{sB}, 7
    s_lshr_b32 s{sT1}, s{sT0}, 2
    s_add_u32 s{sT0}, s{sT0}, s{sT1}
    s_mul_i32 s{sT1}, s{sCT}, 5
    s_lshr_b32 s{sT1}, s{sT1}, 1
    s_add_u32 s{sCX}, s{sT0}, s{sT1}
    s_sub_u32 s{sT0}, s{sCX}, 10
    s_cmp_ge_u32 s{sCX}, 10
    s_cselect_b32 s{sCX}, s{sT0}, s{sCX}""")
    if not CFG["rot"]: A(f"s_mov_b32 s{sCX}, 0")
    A(f"s_lshl_b32 s{sCW}, s{sCX}, 19\ns_lshl_b32 s{sCX}, s{sCX}, 7")
    A(f"s_mul_i32 s{sT0}, s{sB}, 122880\ns_lshl_b32 s{sT1}, s{sH0}, 8\ns_sub_u32 s{sT2}, 5242880, s{sT1}")
    A("s_waitcnt lgkmcnt(0)")
    lstamp(A, "karg")
    srd_off(A, sX, 4, sT0, 122880)
    srd_off(A, sWQ, 10, sT1, f"s{sT2}")
    def issue_X(it):
        base = S.ob["X", it][0]
        for a in range(3):
            A(f"s_mov_b32 m0, {base + a*4096}")
            A(f"s_add_u32 s{sT0}, s{sCX}, {a*40960}")
            for n in range(4):
                A.vm(f"buffer_load_dwordx4 v{vX+n}, s[{sX}:{sX+3}], s{sT0} offen offset:{n*1024} lds", ("X", it))
        A(f"s_add_u32 s{sCX}, s{sCX}, 128\ns_cmp_eq_u32 s{sCX}, 1280\ns_cselect_b32 s{sCX}, 0, s{sCX}")
    def issue_Wx(kind, it):
        base = S.ob[kind, it][0]
        r, c = (1, sCW2) if kind == "W2" else (0, sCW)
        if kind == "W" and it == 8: A(f"s_mov_b32 s{sCW2}, s{sCW}")
        for a in range(4):
            A(f"s_mov_b32 m0, {base + a*4352}")
            A(f"s_add_u32 s{sT0}, s{c}, {a*32768 + r*256}")
            for n in range(4):
                A.vm(f"buffer_load_dwordx4 v{vW+n}, s[{sWQ}:{sWQ+3}], s{sT0} offen offset:{n*1088} lds", (kind, it))
        A(f"s_add_u32 s{c}, s{c}, {64*8192}\ns_cmp_eq_u32 s{c}, 5242880\ns_cselect_b32 s{c}, 0, s{c}")
    def issue_K(t):
        if CFG.get("noload") and t > 4: return
        for a in range(2):
            A(f"s_mov_b32 m0, {KR(t) + a*4224}\ns_mov_b32 s{sT0}, {t*8192 + a*1024}")
            for n in range(4):
                A.vm(f"buffer_load_dwordx4 v{vK+n}, s[{sK}:{sK+3}], s{sT0} offen offset:{n*1056}{NT} lds", ("K", t))
    def issue_V(t):
        if CFG.get("noload") and t > 4: return
        for a in range(2):
            A(f"s_mov_b32 m0, {VR(t) + a*4352}\ns_mov_b32 s{sT0}, {t*8192 + a*1024}")
            for n in range(4):
                A.vm(f"buffer_load_dwordx4 v{vV+n}, s[{sV}:{sV+3}], s{sT0} offen offset:{n*1088}{NT} lds", ("V", t))
    def kv_setup():
        A(f"""v_lshrrev_b32 v1, 5, v0
        v_xor_b32 v1, v2, v1
        v_lshlrev_b32 v4, 11, v3
        v_add_u32 v4, 4096, v4
        v_lshl_add_u32 v{vK}, v1, 4, v4
        v_lshl_add_u32 v{vV}, v2, 4, v4""")
        for j in range(1, 4):
            A(f"v_subrev_u32 v{vK+j}, {j*800}, v{vK}\nv_subrev_u32 v{vV+j}, {j*832}, v{vV}")
        A(f"s_lshl_b32 s{sT3}, s{sB}, 5\ns_add_u32 s{sT3}, s{sT3}, s{sH0}\ns_lshl_b32 s{sT3}, s{sT3}, 17")
        for d, p in ((sK, 6), (sV, 8)):
            srd_off(A, d, p, sT3, 262144 + 4096)
            A(f"s_sub_u32 s{d}, s{d}, 4096\ns_subb_u32 s{d+1}, s{d+1}, 0")
    def late_setup():
        for n in range(10):
            A(f"v_add_u32 v1, {64*n}, v0\nv_mul_u32_u24 v2, 3277, v1\nv_lshrrev_b32 v2, 16, v2")
            A(f"v_mul_u32_u24 v3, 20, v2\nv_sub_u32 v3, v1, v3\nv_mul_u32_u24 v2, 1280, v2\nv_lshl_add_u32 v2, v3, 4, v2")
            A(f"v_subrev_u32 v{vWo+n}, {(n%4)*1024}, v2")
        A(f"v_lshlrev_b32 v{vOo}, 4, v0\nv_and_b32 v1, 15, v0\nv_lshlrev_b32 v{vFa}, 2, v1")
        A(f"s_mul_i32 s{sT0}, s{sKQ}, {1024*1280}\ns_mul_i32 s{sT1}, s{sCT}, 320\ns_add_u32 s{sT0}, s{sT0}, s{sT1}\ns_sub_u32 s{sT1}, 5242880, s{sT0}")
        srd_off(A, sWO, 12, sT0, f"s{sT1}")
        A(f"s_lshl_b32 s{sT2}, s{sB}, 5\ns_lshl_b32 s{sT3}, s{sKQ}, 3\ns_add_u32 s{sT2}, s{sT2}, s{sT3}\ns_mul_i32 s{sT2}, s{sT2}, 24576")
        srd_off(A, sWS, 18, sT2, 8 * 24576)
        A(f"s_lshl2_add_u32 s{sT0}, s{sB}, s{sKQ}\ns_lshl_b32 s{sT0}, s{sT0}, 8\ns_add_u32 s{sT0}, s{sT0}, {WS_F1}")
        srd_off(A, sFL, 18, sT0, 256)
        srd(A, sOUT, "s16", "s17", 256)
        A(f"s_lshl_b32 s{sT0}, s{sB}, 2\nv_mov_b32 v{vCa}, s{sT0}")
        A(f"s_lshl_b32 s{sT0}, s{sCT}, 2\ns_lshl_b32 s{sT0}, 15, s{sT0}\ns_andn2_b32 s{sMask}, 0x7777, s{sT0}")
        for k in range(4):
            if CFG["drot"]: A(f"s_add_u32 s{sT0}, s{sB}, {k}\ns_and_b32 s{sDt+k}, s{sT0}, 3")
            else: A(f"s_mov_b32 s{sDt+k}, {k}")
        A(f"s_lshl_b32 s{sPp}, s{sCT}, 3")
        if CFG["psh"]: A(f"s_and_b32 s{sT0}, s{sB}, 7\ns_lshl_b32 s{sT0}, s{sT0}, 1\ns_lshr_b32 s{sT0}, {sum((i % 3) << (2*i) for i in range(8))}, s{sT0}\ns_and_b32 s{sT0}, s{sT0}, 3")
        else: A(f"s_mov_b32 s{sT0}, 0")
        for g in range(1, 4):
            A(f"s_add_u32 s{sT1}, s{sT0}, s{sCT}\ns_add_u32 s{sT1}, s{sT1}, 1\ns_and_b32 s{sT1}, s{sT1}, 3\ns_lshl_b32 s{sPp+g}, s{sT1}, 3")
            A(f"s_add_u32 s{sT0}, s{sT0}, 1\ns_cmp_eq_u32 s{sT0}, 3\ns_cselect_b32 s{sT0}, 0, s{sT0}")
    def chunk_u(j, mul):
        A(f"s_add_u32 s{sT0}, s{sPp + ((j & 15) >> 2)}, s{sDt + (j & 3)}")
        if j >= 16: A(f"s_add_u32 s{sT0}, s{sT0}, 4")
        A(f"s_mul_i32 s{sT0}, s{sT0}, {mul}")
    def issue_wo(j):
        chunk_u(j, 40960)
        for n in range(10):
            if n % 4 == 0: A(f"s_mov_b32 m0, {S.wo[j] + n*1024}\ns_nop 0")
            A.vm(f"buffer_load_dwordx4 v{vWo+n}, s[{sWO}:{sWO+3}], s{sT0} offen offset:{(n%4)*1024} lds", ("wo", j))
    def issue_O(j):
        chunk_u(j, 6144)
        for n in range(6):
            if n % 4 == 0:
                A(f"s_mov_b32 m0, {S.oo[j] + n*1024}")
                A(f"s_add_u32 s{sT0}, s{sT0}, 4096" if n else "s_nop 0")
            A.vm(f"buffer_load_dwordx4 v{vOo}, s[{sWS}:{sWS+3}], s{sT0} offen offset:{(n%4)*1024} sc1 lds", ("O", j))
    ldc = f"buffer_load_dword v{vCd}, v{vCa}, s[{sOUT}:{sOUT+3}], 0 offen sc1"
    ldf = lambda r: f"buffer_load_dword v{vFd}, v{vFa}, s[{sFL}:{sFL+3}], 0 offen offset:{128*r} sc1"
    def tstc(): A(f"v_readfirstlane_b32 s{sT1}, v{vCd}\ns_cmp_ge_u32 s{sT1}, 16")
    def tstf(): A(f"v_cmp_eq_u32 vcc, 1, v{vFd}\ns_and_b32 s{sT2}, vcc_lo, s{sMask}\ns_cmp_eq_u32 s{sT2}, s{sMask}")
    def ctl(name):
        if name == "kvset": kv_setup()
        elif name == "late": late_setup()
        elif name == "cntI": A.vm(ldc, "cnt")
        elif name == "f1I": A.vm(ldf(0), "f1")
        elif name in ("cntC", "f1C"):
            c = name == "cntC"
            A.wait_vm("cnt" if c else "f1")
            (tstc if c else tstf)()
            A(f"s_cbranch_scc1 L_{name}_done")
            spin(A, f"L_{name}", ldc if c else ldf(0), tstc if c else tstf)
            lstamp(A, name)
        elif name == "spin2":
            lstamp(A, "spin")
            spin(A, "L_spin2", ldf(1), tstf)
            A.vm_q = []
            lstamp(A, "flags")
    for n in range(-1, len(BARS)):
        if n >= 0:
            need = [it for it in A.vm_q if it in S.ob and S.first(it) <= n]
            if need: A.wait_vm(need[-1])
            lstamp(A, f"arr {BARS[n]}")
            A("s_barrier")
            lstamp(A, f"dep {BARS[n]}")
        for it in S.iss[n]:
            k = it[0]
            if k == "ctl": ctl(it[1])
            elif k == "X": issue_X(it[1])
            elif k in ("W", "W2"): issue_Wx(k, it[1])
            elif k == "K": issue_K(it[1])
            elif k == "V": issue_V(it[1])
            elif k == "wo": issue_wo(it[1])
            elif k == "O": issue_O(it[1])
    assert not A.vm_q
    lst_flush(A)
    stamp_flush(A, 1, 0)
    A("s_endpgm")

    A.label("K_notld")
    vKa, vVa, vL, vTs, vSt, vD, vD2, vWa, vXa, vXb = 2, 3, 4, 6, 7, 8, 9, 10, 11, 252
    vT, vQ, vO, vS, vC, vKf, vVf = 16, 32, 64, 128, 160, 176, 208
    vP = [24, 240]
    FA = [208, 224]; FB = [240, 244]
    vHi, vN, vR, vCp, vG = 248, 249, 250, 251, 9
    A(f"s_and_b32 s{sI}, s{sW}, 3\ns_lshr_b32 s{sRr}, s{sW}, 2")
    A(f"""v_lshrrev_b32 v{vHi}, 5, v0
    v_and_b32 v{vN}, 31, v0
    v_bfe_u32 v{vG}, v0, 4, 1
    v_bfe_u32 v{vR}, v0, 2, 2
    v_and_b32 v1, 1, v0
    v_bfe_u32 v15, v0, 1, 1
    v_lshl_add_u32 v{vCp}, v1, 1, v15
    v_lshlrev_b32 v{vCp}, 3, v{vCp}
    v_lshl_add_u32 v{vCp}, v{vG}, 5, v{vCp}
    v_lshlrev_b32 v{vSt}, 4, v0""")
    A(f"s_cmp_eq_u32 s{sW}, 3\ns_cbranch_scc1 K_w3")
    A(f"""s_lshl_b32 s{sT0}, s{sI}, 12
    s_add_u32 s{sT1}, s{sT0}, {XB1}
    s_add_u32 s{sT0}, s{sT0}, {XB2}
    v_bfe_u32 v1, v0, 1, 3
    v_xor_b32 v1, v1, v{vHi}
    v_lshlrev_b32 v1, 4, v1
    v_lshl_add_u32 v1, v{vN}, 7, v1""")
    for ks in range(4):
        A(f"v_xor_b32 v15, {ks<<5}, v1\nv_add_u32 v{vXa+ks}, s{sT0}, v15\nv_add_u32 v{vXb+ks}, s{sT1}, v15")
    A(f"""v_lshl_add_u32 v1, v{vHi}, 3, v{vR}
    v_mul_u32_u24 v1, 1088, v1
    s_mov_b32 s{sT1}, {WSL['A']}
    v_add3_u32 v{vWa}, v1, v{vCp}, s{sT1}
    v_and_b32 v1, 7, v0
    v_mul_u32_u24 v1, 1056, v1
    v_bfe_u32 v15, v0, 3, 2
    v_lshl_add_u32 v1, v15, 8, v1
    v_xor_b32 v15, v{vHi}, v{vG}
    v_lshl_add_u32 v{vKa}, v15, 4, v1
    v_lshl_add_u32 v1, v{vHi}, 2, v{vR}
    v_mul_u32_u24 v1, 1088, v1
    s_mov_b32 s{sT1}, {VBASE}
    v_add3_u32 v{vVa}, v1, v{vCp}, s{sT1}""")
    A(f"s_mov_b32 s{sCs}, {f2u(CSC):#x}\ns_mov_b32 s{sCs+1}, {f2u(CSC):#x}\ns_mov_b32 s{sThr}, {f2u(THR):#x}")
    assert all(S.oo[j] == S.oo[0] + 16384 * j and S.oo[16 + j] == S.oo[16] + OSZ * j for j in range(4))
    A(f"""s_cmp_eq_u32 s{sRr}, 0
    s_mov_b32 s{sT1}, {OSZ}
    s_cselect_b32 s{sT1}, 16384, s{sT1}
    s_mov_b32 s{sT2}, {S.oo[16]}
    s_cselect_b32 s{sT2}, {S.oo[0]}, s{sT2}
    s_lshl_b32 s{sT0}, s{sI}, 11
    s_add_u32 s{sT2}, s{sT2}, s{sT0}""")
    for dt in range(4):
        if CFG["drot"]: A(f"s_sub_u32 s{sT0}, {dt}, s{sB}\ns_and_b32 s{sT0}, s{sT0}, 3")
        else: A(f"s_mov_b32 s{sT0}, {dt}")
        A(f"s_mul_i32 s{sT0}, s{sT0}, s{sT1}\ns_add_u32 s{sOw+dt}, s{sT0}, s{sT2}")
    A("s_waitcnt lgkmcnt(0)")
    A(f"s_lshl_b32 s{sT0}, s{sB}, 5\ns_add_u32 s{sT0}, s{sT0}, s{sH0}\ns_add_u32 s{sT0}, s{sT0}, s{sRr}")
    A(f"s_mul_i32 s{sT0}, s{sT0}, 24576\ns_lshl_b32 s{sT1}, s{sI}, 11\ns_add_u32 s{sT0}, s{sT0}, s{sT1}")
    srd_off(A, sWS, 18, sT0, 24576)
    A(f"""s_lshl2_add_u32 s{sT0}, s{sB}, s{sKQ}
    s_lshl1_add_u32 s{sT0}, s{sT0}, s{sRr}
    s_lshl_b32 s{sT0}, s{sT0}, 7
    s_lshl2_add_u32 s{sT1}, s{sCT}, s{sI}
    s_lshl2_add_u32 s{sT0}, s{sT1}, s{sT0}
    s_add_u32 s{sT0}, s{sT0}, {WS_F1}""")
    srd_off(A, sFL, 18, sT0, 4)
    A(f"s_cmp_eq_u32 s{sRr}, 0\ns_cbranch_scc0 K_bgrp")

    def xsrc(j, ks):
        a = S.ob["X", j][0]
        return ("lds", vXa + ks, a - XB2) if a >= XB2 else ("lds", vXb + ks, a - XB1)
    def wsrc(a, ks): return [(vWa, a - WSL["A"] + ks * 256 + 64 * t, a - WSL["A"] + 4352 + ks * 256 + 64 * t) for t in range(4)]

    def kread(t, ks): return f"ds_read_b128 {vr(vKf+4*ks,4)}, v{vKa} offset:{KR(t) + 32*ks}"
    def vread(t, m, dt, p): return f"ds_read_b64_tr_b16 {vr(vVf+16*m+4*dt+2*p,2)}, v{vVa} offset:{VR(t) - VBASE + (2*m+p)*256 + 64*dt}"
    def Sx(t): return vS + 16 * (t & 1)
    def qk(t, ks, c0): return f"{MFMA} {vr(Sx(t),16)}, {vr(vKf+4*ks,4)}, {vr(vQ+4*ks,4)}, " + (c0 if ks == 0 else vr(Sx(t),16))
    def pv(t, m, dt, z): return f"{MFMA} {vr(vO+16*dt,16)}, {vr(vVf+16*m+4*dt,4)}, {vr(vP[t&1]+4*m,4)}, " + ("0" if z and m == 0 else vr(vO+16*dt,16))
    def tok(t, x):
        c, i = x[0], int(x[1:] or 0)
        if c == "E": return f"v_exp_f32 v{vT+(i&7)}, v{Sx(t)+i}"
        if c == "A": return f"v_add_f32 v{vTs}, v{vT}, v{vT+1}" if i == 1 else f"v_add_f32 v{vTs}, v{vTs}, v{vT+(i&7)}"
        if c == "C": return f"v_cvt_pk_bf16_f32 v{vP[t&1]+i}, v{vT+((2*i)&7)}, v{vT+((2*i+1)&7)}"
        if c == "M": return f"v_cmp_lt_f32 vcc, s{sThr}, v{vTs}"
        if c == "L": return f"v_add_f32 v{vL}, v{vL}, v{vTs}"
        if c == "N": return tok(t + 1, "E0")
    PLAN = "E1 E2|A1 C0 E3|A2 E4 A3|C1 E5 A4|E6 A5 C2|E7 A6|E8 A7 C3|E9 A8|E10 A9 C4|E11 A10|E12 A11 C5|E13 A12|E14 A13 C6 E15|A14 A15 M C7".split("|")
    TOKS = " ".join(PLAN).split()
    rare_sites = [[], []]
    def rare(t):
        k = len(rare_sites[t & 1]); lb = f"R{t&1}_{k}"
        rare_sites[t & 1].append(lb)
        A(f"s_cbranch_vccnz {lb}"); A.label(lb + "_back")
    def cvq(ks):
        t, h = ks >> 1, ks & 1
        for j in range(4 * h, 4 * h + 4): A(f"v_pk_mul_f32 {vr(vO+16*t+2*j,2)}, {vr(vO+16*t+2*j,2)}, s[{sCs}:{sCs+1}]")
        for j in range(4 * h, 4 * h + 4): A(f"v_cvt_pk_bf16_f32 v{vQ+8*t+j}, v{vO+16*t+2*j}, v{vO+16*t+2*j+1}")
    def attention(B, t0, G):
        if G:
            def fill(i):
                if i == 0: B.bar(t0 - 2)
                for ks in ((0, 1, 2), (3, 4, 5), (6, 7), ())[i]: A.ds(kread(t0, ks), "K")
            G.flush(fill)
            A("s_nop 1")
            cvq(0)
            A.wait_ds()
            A("s_nop 0")
        else:
            B.bar(t0 - 2)
            for ks in range(8): A.ds(kread(t0, ks), "K")
            A.wait_ds()
            B.bar(t0 - 1)
        for ks in range(8):
            A(qk(t0, ks, "0"))
            if G and ks == 0: B.bar(t0 - 1)
            if ks >= 1: A.ds(kread(t0 + 1, ks - 1), "K")
            if G and ks < 7: cvq(ks + 1); A("s_nop 1")
        A("s_nop 3")
        A.ds(kread(t0 + 1, 7), "K")
        A("s_nop 6")
        s0 = Sx(t0)
        A(f"v_max3_f32 v{vD}, v{s0}, v{s0+1}, v{s0+2}\nv_max3_f32 v{vD2}, v{s0+3}, v{s0+4}, v{s0+5}")
        for j in range(5): A(f"v_max3_f32 v{(vD,vD2)[j&1]}, v{(vD,vD2)[j&1]}, v{s0+6+2*j}, v{s0+7+2*j}")
        A(f"""v_max_f32 v{vD}, v{vD}, v{vD2}
        v_mov_b32 v{vD2}, v{vD}
        s_nop 1
        v_permlane32_swap_b32 v{vD2}, v{vD}
        s_nop 1
        v_max_f32 v{vD}, v{vD}, v{vD2}
        v_sub_f32 v{vD}, 0, v{vD}
        v_mov_b32 v{vD2}, v{vD}""")
        for j in range(8): A(f"v_mov_b64 {vr(vC+2*j,2)}, {vr(vD,2)}")
        for j in range(8): A(f"v_pk_add_f32 {vr(s0+2*j,2)}, {vr(s0+2*j,2)}, {vr(vD,2)}")
        A(tok(t0, "E0"))
        A.wait_ds()
        tk = [x for x in TOKS if x != "M"]
        for ks in range(8):
            A(qk(t0 + 1, ks, vr(vC, 16)))
            if ks == 0: B.bar(t0)
            else: A.ds(kread(t0 + 2, ks - 1), "K")
            n = 4 if ks < 7 else len(tk)
            for x in tk[:n]: A(tok(t0, x))
            tk = tk[n:]
        A.ds(kread(t0 + 2, 7), "K")
        A(f"v_mov_b32 v{vL}, v{vTs}")
        A.wait_ds()
        B.bar(t0 + 1)
        A(tok(t0, "N"))
        for t in range(t0 + 1, t0 + 15):
            vq = [vread(t - 1, m, dt, p) for m in range(2) for dt in range(4) for p in range(2)]
            kq = [kread(t + 2, ks) for ks in range(8)] if t + 2 < t0 + 16 else []
            mf = [qk(t + 1, ks, vr(vC, 16)) for ks in range(8)] + [pv(t - 1, m, dt, t - 1 == t0) for m in range(2) for dt in range(4)]
            for g in range(16):
                A(mf[g])
                if g == 7: A.wait_ds("V0")
                if g == 11: A.wait_ds("V1")
                if g < 8:
                    for _ in range(2): A.ds(vq.pop(0), "V0" if g < 4 else "V1")
                elif g < 12 and kq:
                    for _ in range(2): A.ds(kq.pop(0), "K")
                if g < 14:
                    for x in PLAN[g].split(): A(tok(t, x))
                elif g == 14:
                    if A.lds_q: A.wait_ds()
                    B.bar(t + 1)
                else:
                    rare(t); A(tok(t, "L")); A(tok(t, "N"))
        t = t0 + 15
        vq = [vread(t - 1, m, dt, p) for m in range(2) for dt in range(4) for p in range(2)]
        tk = list(TOKS)
        for m in range(2):
            for _ in range(8): A.ds(vq.pop(0), f"V{m}")
            for x in tk[:6]: A(tok(t, x))
            tk = tk[6:]
        A.wait_ds("V0")
        for g in range(8):
            A(pv(t - 1, g >> 2, g & 3, False))
            if g == 3: A.wait_ds()
            n = 4 if g < 6 else len(tk)
            for x in tk[:n]: A(tok(t, x))
            tk = tk[n:]
        rare(t)
        A(tok(t, "L"))
        A(f"v_mov_b32 v{vD}, v{vL}\ns_nop 1\nv_permlane32_swap_b32 v{vD}, v{vL}\ns_nop 1")
        A(f"v_add_f32 v{vL}, v{vL}, v{vD}\nv_rcp_f32 v{vL}, v{vL}")
        B.bar(t + 1)
        for dt in range(4):
            for m in range(2):
                for p in range(2): A.ds(vread(t, m, dt, p), ("V", dt, m))
        A(f"v_mov_b32 v{vL+1}, v{vL}")
        for dt in range(4): A(f"v_add_u32 v{vT+dt}, s{sOw+dt}, v{vSt}")
        def fin(dt):
            for j in range(8): A(f"v_pk_mul_f32 {vr(vO+16*dt+2*j,2)}, {vr(vO+16*dt+2*j,2)}, {vr(vL,2)}")
            for j in range(8): A(f"v_cvt_pk_bf16_f32 v{vKf+8*dt+j}, v{vO+16*dt+2*j}, v{vO+16*dt+2*j+1}")
            A(f"s_mov_b32 s{sT0}, {dt*6144}")
            for m in range(2):
                if not CFG.get("nost"): A(f"buffer_store_dwordx4 {vr(vKf+8*dt+4*m,4)}, v{vSt}, s[{sWS}:{sWS+3}], s{sT0} offen offset:{m*1024} sc1")
            for m in range(2): A.ds(f"ds_write_b128 v{vT+dt}, {vr(vKf+8*dt+4*m,4)} offset:{m*1024}", "W")
        for dt in range(4):
            for m in range(2):
                A.wait_ds(("V", dt, m))
                A(pv(t, m, dt, False))
            if dt == 1: A("s_nop 3")
            if dt >= 1: fin(dt - 1)
        fin(3)
        A(f"v_mov_b32 v{vD}, 1")
        A.wait_ds()
    flag1 = f"buffer_store_dword v{vD}, v{vSt}, s[{sFL}:{sFL+3}], 0 offen sc1"

    BA = Bars(A, CFG['cycA'])
    G = Gemm4(A, vO, FA, FB)
    for j in range(10):
        G.body(lambda: BA.bar(f"Q{j}"), [dict(b=xsrc(j, ks), a=wsrc(S.ob["W", j][0], ks)) for ks in range(4)])
    attention(BA, 0, G)
    A("s_branch K_op0")

    A.label("K_bgrp")
    BB = Bars(A, CFG['cycB'])
    def xreg(it, ks): return (16 + 16 * it if it < 3 else 128 + 16 * (it - 3)) + 4 * ks
    for it in range(8):
        BB.bar(f"Q{it}")
        for ks in range(4):
            _, v, off = xsrc(it, ks)
            A(f"ds_read_b128 {vr(xreg(it,ks),4)}, v{v} offset:{off}")
        A("s_waitcnt lgkmcnt(0)")
    if CFG["prio"]: A("s_setprio 1")
    G = Gemm4(A, vO, FA, FB)
    for i in range(10):
        e = S.q2e[i]
        if BARS[BB.n] != e and G.pend:
            G.flush(lambda k: BB.bar(BARS[BB.n]) if k == 0 else None)
        BB.upto(e, f"B_i{i}")
        src = (lambda ks: xsrc(8 + i, ks)) if i < 2 else (lambda ks: ("reg", xreg(i - 2, ks)))
        G.body(lambda: BB.bar(e), [dict(b=src(ks), a=wsrc(S.w2a[i], ks)) for ks in range(4)])
    G.flush(lambda k: BB.bar(BARS[BB.n]) if k == 0 else None)
    if CFG["prio"]: A("s_setprio 0")
    A("s_nop 1")
    for ks in range(8): cvq(ks)
    BB.upto(14, "B_i10")
    attention(BB, 16, None)
    stamp(A, 0)
    while BB.n <= BI[CFG["BE"]]: BB.bar(BARS[BB.n])
    A(f"s_waitcnt vmcnt(0)\n{flag1}")
    if CFG["stamps"]:
        stamp(A, 1)
        A(f"s_cmp_eq_u32 s{sI}, 0\ns_cbranch_scc0 K_bend")
        stamp_flush(A, 2, 9)
        stamp_flush(A, 4, 20, 88)
        A.label("K_bend")
    A("s_endpgm")

    for par in range(2):
        for k, lb in enumerate(rare_sites[par]):
            A.label(lb); A(f"s_mov_b32 s{sId}, {k}\ns_branch RH{par}")
        A.label(f"RH{par}")
        Sc, Sn = Sx(par), Sx(par + 1)
        A(f"v_max3_f32 v{vD}, v{Sc}, v{Sc+1}, 0")
        for i in range(2, 16, 2): A(f"v_max3_f32 v{vD}, v{vD}, v{Sc+i}, v{Sc+i+1}")
        A(f"""v_mov_b32 v{vD2}, v{vD}
        s_nop 1
        v_permlane32_swap_b32 v{vD2}, v{vD}
        s_nop 1
        v_max_f32 v{vD}, v{vD}, v{vD2}
        v_sub_f32 v{vD2}, 0, v{vD}
        v_exp_f32 v{vD2}, v{vD2}
        s_nop 7
        s_nop 7""")
        for i in range(16): A(f"v_sub_f32 v{Sc+i}, v{Sc+i}, v{vD}")
        for i in range(16): A(f"v_sub_f32 v{vC+i}, v{vC+i}, v{vD}")
        for i in range(16): A(f"v_sub_f32 v{Sn+i}, v{Sn+i}, v{vD}")
        A(f"v_mul_f32 v{vL}, v{vD2}, v{vL}")
        for i in range(64): A(f"v_mul_f32 v{vO+i}, v{vD2}, v{vO+i}")
        A(tok(par, "E0"))
        for x in TOKS:
            if x != "M": A(tok(par, x)); A("s_nop 0")
        A("s_nop 1")
        for k, lb in enumerate(rare_sites[par][:-1]): A(f"s_cmp_eq_u32 s{sId}, {k}\ns_cbranch_scc1 {lb}_back")
        A(f"s_branch {rare_sites[par][-1]}_back")

    A.label("K_w3")
    A("s_waitcnt lgkmcnt(0)")
    srd(A, sFL, "s18", "s19", WS_F2 + 65536)
    srd(A, sOUT, "s16", "s17", 256)
    A(f"""s_lshl2_add_u32 s{sT0}, s{sB}, s{sCT}
    s_lshl_b32 s{sT0}, s{sT0}, 9
    s_lshl4_add_u32 s{sT0}, s{sKQ}, s{sT0}
    s_add_u32 s{sT0}, s{sT0}, {WS_F2}
    s_lshl2_add_u32 s{sT1}, s{sB}, s{sKQ}
    s_lshl_b32 s{sT1}, s{sT1}, 8
    s_lshl4_add_u32 s{sT1}, s{sCT}, s{sT1}
    s_add_u32 s{sT1}, s{sT1}, {WS_F1 - 512}
    v_mov_b32 v1, s{sT0}
    v_mov_b32 v2, s{sT1}
    v_cmp_gt_u32 vcc, 4, v0
    v_mov_b32 v12, 0
    v_mov_b32 v13, 0
    v_cndmask_b32 v1, v2, v1, vcc
    v_lshl_add_u32 v1, v0, 7, v1
    v_mov_b32 v14, 0
    v_mov_b32 v15, 0
    s_mov_b64 exec, 63
    buffer_store_dwordx4 v[12:15], v1, s[{sFL}:{sFL+3}], 0 offen sc1
    s_mov_b64 exec, 1
    s_lshl_b32 s{sT0}, s{sB}, 2
    v_mov_b32 v2, s{sT0}
    v_mov_b32 v3, 1
    s_waitcnt vmcnt(0)
    buffer_atomic_add v3, v2, s[{sOUT}:{sOUT+3}], 0 offen sc1
    s_mov_b64 exec, -1""")
    BW = Bars(A)

    vAcc, vRv = 64, 176
    vA, vB = 16, 32
    OB = [0, 57344, 114688]
    sOwn, sP2, sF2, sOo, sMk, sEx = 20, 24, 28, 32, 33, 34
    def bsel(a, span):
        k = max(i for i in range(3) if OB[i] <= a)
        assert a - OB[k] + span < 65536
        return k, a - OB[k]
    for role in (1, 0):
        Bx = BW if role else BA
        nT = 3 if role else 4
        if role == 0: A.label("K_op0")
        A(f"""v_lshl_add_u32 v1, v{vHi}, 3, v{vR}
        v_mul_u32_u24 v1, 320, v1
        v_add_u32 v1, v1, v{vCp}""")
        if role == 0:
            for s in range(4):
                A(f"s_add_u32 s{sOwn+s}, s{sKQ}, {s}\ns_and_b32 s{sOwn+s}, s{sOwn+s}, 3\ns_lshl_b32 s{sT0}, s{sOwn+s}, 6\nv_add_u32 v{vA+s}, s{sT0}, v1")
            A(f"s_lshl_b32 s{sT0}, s{sW}, 11\nv_add_u32 v{vB}, s{sT0}, v{vSt}")
            na, nb = 4, 1
        else:
            A(f"v_add_u32 v{vA}, 256, v1\ns_cmp_eq_u32 s{sKQ}, 3\ns_cselect_b32 s{sOwn}, 0, s{sKQ}")
            for s in range(3):
                if s: A(f"s_add_u32 s{sOwn+s}, s{sOwn+s-1}, 1\ns_cmp_eq_u32 s{sOwn+s}, 3\ns_cselect_b32 s{sOwn+s}, 0, s{sOwn+s}")
                A(f"s_lshl_b32 s{sT0}, s{sOwn+s}, 11\nv_add_u32 v{vB+s}, s{sT0}, v{vSt}")
            na, nb = 1, 3
        for k in (1, 2):
            for s in range(na): A(f"v_add_u32 v{vA+4*k+s}, {OB[k]}, v{vA+s}")
            for s in range(nb): A(f"v_add_u32 v{vB+4*k+s}, {OB[k]}, v{vB+s}")
        def hop_setup():
            A(f"""s_lshl2_add_u32 s{sT0}, s{sB}, s{sCT}
            s_lshl_b32 s{sT1}, s{sT0}, 18
            s_add_u32 s{sT1}, s{sT1}, {WS_P}
            s_lshl_b32 s{sT0}, s{sT0}, 9
            s_add_u32 s{sT0}, s{sT0}, {WS_F2}""")
            srd_off(A, sP2, 18, sT1, 4 * 65536)
            srd_off(A, sF2, 18, sT0, 512)
            srd(A, sOUT, "s14", "s15", 1966080)
            A(f"s_lshl2_add_u32 s{sT3}, s{sKQ}, s{sW}\nv_mov_b32 v13, s{sOwn}\nv_mov_b32 v14, 1")
            for s in range(1, nT): A(f"v_writelane_b32 v13, s{sOwn+s}, {s}")
            A(f"s_lshl_b32 s{sT0}, s{sT3}, 2\nv_lshlrev_b32 v13, 7, v13\nv_add_u32 v13, s{sT0}, v13")
            for s in range(nT): A(f"s_lshl_b32 s{sOwn+s}, s{sOwn+s}, 16\ns_lshl_b32 s{sT0}, s{sT3}, 12\ns_add_u32 s{sOwn+s}, s{sOwn+s}, s{sT0}")
            A(f"""v_and_b32 v1, 15, v0
            v_lshlrev_b32 v1, 2, v1
            s_lshl_b32 s{sT0}, s{sKQ}, 7
            v_add_u32 v11, s{sT0}, v1
            s_lshl_b32 s{sT1}, 0x1111, s{sW}
            s_lshl_b32 s{sT0}, s{sKQ}, 2
            s_lshl_b32 s{sT0}, 15, s{sT0}
            s_andn2_b32 s{sMk}, s{sT1}, s{sT0}
            v_mul_u32_u24 v12, 1280, v{vN}
            v_lshl_add_u32 v12, v{vHi}, 4, v12
            s_mul_i32 s{sOo}, s{sB}, 122880
            s_mul_i32 s{sT0}, s{sCT}, 320
            s_add_u32 s{sOo}, s{sOo}, s{sT0}""")
            if role == 0:
                A(f"s_mul_i32 s{sT0}, s{sW}, 40960\ns_add_u32 s{sOo}, s{sOo}, s{sT0}\ns_lshl_b32 s{sT0}, s{sKQ}, 6\ns_add_u32 s{sOo}, s{sOo}, s{sT0}")
                A(f"s_mov_b64 s[{sEx}:{sEx+1}], 14")
            else:
                A(f"s_mul_i32 s{sT0}, s{sKQ}, 40960\ns_add_u32 s{sOo}, s{sOo}, s{sT0}\ns_add_u32 s{sOo}, s{sOo}, 256")
                A(f"s_cmp_eq_u32 s{sKQ}, 3\ns_cselect_b64 s[{sEx}:{sEx+1}], 7, 6")
        if role == 1: hop_setup()
        G = Gemm3(A, vAcc, [128, 144], [132, 148]) if role else Gemm4(A, vAcc, [128, 144], [160, 164])
        def steps(j):
            ka, oa = bsel(S.wo[j], 20 * 320 + 1); kb, ob = bsel(S.oo[j], 1025)
            r = []
            for ks in range(2):
                o0, o1 = oa + 16 * ks * 320, oa + (16 * ks + 4) * 320
                if role: r.append(dict(a=(vA + 4 * ka, o0, o1), b=[(vB + 4 * kb + s, ob + ks * 1024) for s in range(3)]))
                else: r.append(dict(b=("lds", vB + 4 * kb, ob + ks * 1024), a=[(vA + 4 * ka + s, o0, o1) for s in range(4)]))
            return r
        if role: Bx.upto(17, "W3_i0")
        nidle = 0
        while Bx.n < len(BARS):
            e = BARS[Bx.n]
            if role == 0 and e == CFG["DR"] + 1:
                A(f"s_waitcnt vmcnt(0)\n{flag1}")
                hop_setup()
            if e in S.ope: G.body(lambda: Bx.bar(e), [st for j in S.ope[e] for st in steps(j)])
            else: Bx.bar(e)
        def send(s):
            for jj in range(4):
                A(f"buffer_store_dwordx4 {vr(vAcc+16*s+4*jj,4)}, v{vSt}, s[{sP2}:{sP2+3}], s{sOwn+s} offen offset:{jj*1024} sc1")
        if role == 0:
            G.flush(order=(1, 2, 3, 0))
            stamp(A, 0); probe(A, "mf")
            for s in (1, 2, 3): send(s)
        else:
            G.flush((1, 2, 0))
            A("s_nop 3")
            send(1); send(2)
            A(f"s_cmp_eq_u32 s{sKQ}, 3\ns_cbranch_scc0 O_s0")
            A("s_nop 3")
            send(0)
            A.label("O_s0")
        stamp(A, 1); probe(A, "sent")
        A(f"s_waitcnt vmcnt(0)\ns_mov_b64 exec, s[{sEx}:{sEx+1}]\nbuffer_store_dword v14, v13, s[{sF2}:{sF2+3}], 0 offen sc1\ns_mov_b64 exec, -1")
        stamp(A, 2); probe(A, "ack")
        if role == 1: A(f"s_cmp_eq_u32 s{sKQ}, 3\ns_cbranch_scc0 O_rcv\ns_endpgm")
    A.label("O_rcv")
    spin(A, "O_poll", f"buffer_load_dword v14, v11, s[{sF2}:{sF2+3}], 0 offen sc1",
         lambda: A(f"v_cmp_eq_u32 vcc, 1, v14\ns_and_b32 s{sT2}, vcc_lo, s{sMk}\ns_cmp_eq_u32 s{sT2}, s{sMk}"))
    stamp(A, 3); probe(A, "F2")
    A(f"s_lshl_b32 s{sT1}, s{sKQ}, 16\ns_lshl_b32 s{sT0}, s{sW}, 12\ns_add_u32 s{sT1}, s{sT1}, s{sT0}")
    for s in range(1, 4):
        A(f"s_add_u32 s{sT0}, s{sKQ}, {s}\ns_and_b32 s{sT0}, s{sT0}, 3\ns_lshl_b32 s{sT0}, s{sT0}, 14\ns_add_u32 s{sT0}, s{sT0}, s{sT1}")
        for jj in range(4):
            A.vm(f"buffer_load_dwordx4 {vr(vRv+16*(s-1)+4*jj,4)}, v{vSt}, s[{sP2}:{sP2+3}], s{sT0} offen offset:{jj*1024} sc1", s)
    for s in range(1, 4):
        A.wait_vm(s)
        for j in range(8): A(f"v_pk_add_f32 {vr(vAcc+2*j,2)}, {vr(vAcc+2*j,2)}, {vr(vRv+16*(s-1)+2*j,2)}")
    probe(A, "ld")
    for j in range(8): A(f"v_cvt_pk_bf16_f32 v{24+j}, v{vAcc+2*j}, v{vAcc+2*j+1}")
    for m in range(2):
        A(f"buffer_store_dwordx4 {vr(24+4*m,4)}, v12, s[{sOUT}:{sOUT+3}], s{sOo} offen offset:{m*32}")
    if CFG.get("padto"):
        A(f"s_cmp_eq_u32 s{sW}, 3\ns_cbranch_scc1 PAD_done\ns_waitcnt lgkmcnt(0)")
        if CFG.get("probe") == "end": A("s_waitcnt vmcnt(0)\ns_memrealtime s[90:91]\ns_waitcnt lgkmcnt(0)")
        if CFG.get("probe") is not None: A(f"s_sub_u32 s90, s90, s98\ns_add_u32 s90, s90, {CFG['padto']}")
        else: A(f"s_mov_b32 s90, {CFG['padto']}")
        A.label("PAD")
        A(f"s_memrealtime s[96:97]\ns_waitcnt lgkmcnt(0)\ns_sub_u32 s96, s96, s98\ns_cmp_lt_u32 s96, s90\ns_cbranch_scc1 PAD")
        A.label("PAD_done")
    if CFG["stamps"]:
        A("s_waitcnt vmcnt(0)")
        stamp(A, 4)
        A(f"s_cmp_eq_u32 s{sW}, 0\ns_cbranch_scc0 O_e2")
        stamp_flush(A, 5, 11)
        stamp_flush(A, 4, 16, 88)
        A.label("O_e2")
    A("s_endpgm")
    A(f""".section .rodata,"a"
.p2align 6
.amdhsa_kernel {L}
.amdhsa_next_free_vgpr 256
.amdhsa_next_free_sgpr 100
.amdhsa_accum_offset 256
.amdhsa_group_segment_fixed_size 0
.amdhsa_kernarg_size 64
.amdhsa_user_sgpr_count 2
.amdhsa_user_sgpr_kernarg_segment_ptr 1
.amdhsa_system_sgpr_workgroup_id_x 1
.end_amdhsa_kernel""")

def main():
    A = Asm()
    A("; @launch grid=(256,1,1) block=(512,1,1) lds=163840")
    A('.amdgcn_target "amdgcn-amd-amdhsa--gfx950"\n.text')
    kernel(A)
    t = A.text()
    probs = check_hazards(t)
    for p in probs[:40]: print(p)
    print("hazards:", len(probs))
    if CFG.get("show"): S.show()
    open(sys.argv[1], "w").write(t)
    assert all((p * 3277) >> 16 == p // 20 for p in range(640))
main()
```
